```python
import torch

def _softmax(x, axis=-1):
    return torch.softmax(x, dim=axis)
def _gelu(x):
    return torch.nn.functional.gelu(x, approximate="tanh")
def _silu(x):
    return torch.nn.functional.silu(x)
def _sigmoid(x):
    return torch.sigmoid(x)
def _layernorm(x, axis=-1, eps=1e-5):
    m = x.mean(dim=axis, keepdim=True)
    v = x.var(dim=axis, keepdim=True, unbiased=False)
    return (x - m) / torch.sqrt(v + eps)
def _scatter_add(tgt, idx, src, axis=0):
    return tgt.clone().index_add_(axis, idx, src)
def _segment_sum(src, seg, n):
    out = torch.zeros((n,) + src.shape[1:], dtype=src.dtype)
    return out.index_add_(0, seg, src)
def _pad(x, pw):
    flat = tuple(v for pair in reversed(pw) for v in pair)
    return torch.nn.functional.pad(x, flat)

kernel_name = 'standalone__gqa_softmax__near_ridge'

def setup_inputs():

    _w = (lambda a: (lambda t: t.to(torch.bfloat16) if t.is_floating_point() else t)(torch.as_tensor(a)))
    B, Hq, Hkv, Sq, Sk, D = 8, 32, 16, 96, 2048, 128
    return {
        "q": _w((lambda *s: torch.randn(*s, dtype=torch.bfloat16) * 0.8)(B, Hq, Sq, D)),
        "k": _w((lambda *s: torch.randn(*s, dtype=torch.bfloat16) * 0.8)(B, Hkv, Sk, D)),
        "v": _w((lambda *s: torch.randn(*s, dtype=torch.bfloat16) * 0.05)(B, Hkv, Sk, D)),
    }

def reference(q, k, v):
    B, Hq, Sq, D = q.shape
    Hkv = k.shape[1]
    rep = Hq // Hkv
    k = (lambda x, n, axis: torch.repeat_interleave(x, n, dim=axis))(k, rep, axis=1)
    v = (lambda x, n, axis: torch.repeat_interleave(x, n, dim=axis))(v, rep, axis=1)
    scale = D ** -0.5
    scores = torch.einsum("bhqd,bhkd->bhqk", q, k) * scale
    p = _softmax(scores, axis=-1)
    return torch.einsum("bhqk,bhkd->bhqd", p, v)
```

```python
import struct, sys, math

NAME = "standalone__gqa_softmax__near_ridge"
NSLOT = 5
SLOTB = 8192
WREG = NSLOT * SLOTB
STATS = 38912
NT = 32

def fbits(x): return struct.unpack("<I", struct.pack("<f", x))[0]

C_SCALE = fbits((128 ** -0.5) * math.log2(math.e))
THR = fbits(8.0)

Q0 = 16; S0 = 112; P0 = 160
VOFFK = 2; VOFFV = 6; KBASE = 7; VBASE = 8
M_ = 10; L_ = 13
KADDR = 184; VADDR = 192; TMP = 196
AO = 0; AK = 192; AV = 224

out = []
def e(s): out.append("    " + s)
def lab(s): out.append(s + ":")

def interleave(ms, vs, start=0):
    n = len(ms)
    slots = n - start
    per = (len(vs) + slots - 1) // slots if vs else 0
    vi = 0
    for i, m in enumerate(ms):
        e(m)
        if i >= start:
            for _ in range(per):
                if vi < len(vs):
                    e(vs[vi]); vi += 1
    while vi < len(vs):
        e(vs[vi]); vi += 1

def qk_mfmas(t):
    ms = []
    for kk in range(8):
        c = "0" if kk == 0 else f"v[{S0+16*t}:{S0+16*t+15}]"
        ms.append(f"v_mfma_f32_32x32x16_bf16 v[{S0+16*t}:{S0+16*t+15}], a[{AK+4*kk}:{AK+4*kk+3}], v[{Q0+(t*8+kk)*4}:{Q0+(t*8+kk)*4+3}], {c}")
    return ms

def pv_mfmas(t):
    ms = []
    for ks in range(2):
        for dt in range(4):
            o = AO + (t*4+dt)*16
            f = AV + (dt*2+ks)*4
            p = P0 + t*8 + ks*4
            ms.append(f"v_mfma_f32_32x32x16_bf16 a[{o}:{o+15}], a[{f}:{f+3}], v[{p}:{p+3}], a[{o}:{o+15}]")
    return ms

handlers = []
def softmax(t, tag):
    s = S0 + 16*t
    mx = TMP + 4*t; t1 = mx + 1; t2 = mx + 2; f = mx + 3
    m = M_ + t; l = L_ + t
    vs = []
    vs.append(f"v_max3_f32 v{mx}, v{s}, v{s+1}, v{s+2}")
    vs.append(f"v_max3_f32 v{t1}, v{s+3}, v{s+4}, v{s+5}")
    vs.append(f"v_max3_f32 v{mx}, v{mx}, v{s+6}, v{s+7}")
    vs.append(f"v_max3_f32 v{t1}, v{t1}, v{s+8}, v{s+9}")
    vs.append(f"v_max3_f32 v{mx}, v{mx}, v{s+10}, v{s+11}")
    vs.append(f"v_max3_f32 v{t1}, v{t1}, v{s+12}, v{s+13}")
    vs.append(f"v_max3_f32 v{mx}, v{mx}, v{s+14}, v{s+15}")
    vs.append(f"v_max_f32 v{mx}, v{mx}, v{t1}")
    vs.append(f"s_nop 0")
    vs.append(f"v_mov_b32 v{t1}, v{mx}")
    vs.append(f"s_nop 1")
    vs.append(f"v_permlane32_swap_b32 v{mx}, v{t1}")
    vs.append(f"s_nop 1")
    vs.append(f"v_max_f32 v{mx}, v{mx}, v{t1}")
    vs.append(f"v_mul_f32 v{mx}, s37, v{mx}")
    vs.append(f"v_sub_f32 v{t1}, v{mx}, v{m}")
    vs.append(f"v_cmp_lt_f32 vcc, s39, v{t1}")
    vs.append(f"s_nop 4")
    vs.append(f"s_cbranch_vccnz RESC_{tag}_{t}")
    vs.append(f"RET_{tag}_{t}:")
    for r in range(16):
        vs.append(f"v_fma_f32 v{s+r}, v{s+r}, s37, -v{m}")
    for r in range(16):
        vs.append(f"v_exp_f32 v{s+r}, v{s+r}")
    vs.append("s_nop 0")
    for r in range(0, 16, 2):
        vs.append(f"v_cvt_pk_bf16_f32 v{P0+t*8+r//2}, v{s+r}, v{s+r+1}")
    vs.append(f"v_add_f32 v{t1}, v{s}, v{s+1}")
    vs.append(f"v_add_f32 v{t2}, v{s+2}, v{s+3}")
    for r in range(4, 16, 2):
        vs.append(f"v_add_f32 v{t1}, v{t1}, v{s+r}")
        vs.append(f"v_add_f32 v{t2}, v{t2}, v{s+r+1}")
    vs.append(f"v_add_f32 v{t1}, v{t1}, v{t2}")
    vs.append(f"v_add_f32 v{l}, v{l}, v{t1}")
    h = [f"RESC_{tag}_{t}:"]
    h.append(f"v_max_f32 v{t1}, v{m}, v{mx}")
    h.append(f"v_sub_f32 v{f}, v{m}, v{t1}")
    h.append(f"v_exp_f32 v{f}, v{f}")
    h.append(f"v_mov_b32 v{m}, v{t1}")
    h.append(f"s_nop 0")
    h.append(f"v_mul_f32 v{l}, v{l}, v{f}")
    for r in range(64):
        a = AO + t*64 + r
        tt = t1 if (r & 1) == 0 else t2
        h.append(f"v_accvgpr_read_b32 v{tt}, a{a}")
        h.append(f"s_nop 0")
        h.append(f"v_mul_f32 v{tt}, v{tt}, v{f}")
        h.append(f"v_accvgpr_write_b32 a{a}, v{tt}")
    h.append(f"s_branch RET_{tag}_{t}")
    handlers.append(h)
    return vs

def slot_advance():
    return ["s_add_u32 s32, s32, 8192",
            "s_cmp_eq_u32 s32, s40",
            "s_cselect_b32 s32, s31, s32"]

def kread():
    vs = [f"v_add_u32 v{KADDR}, s32, v{KBASE}"]
    for kk in range(1, 8):
        vs.append(f"v_xor_b32 v{KADDR+kk}, {kk*32}, v{KADDR}")
    for kk in range(8):
        vs.append(f"ds_read_b128 a[{AK+4*kk}:{AK+4*kk+3}], v{KADDR+kk}")
    return vs

def vread():
    vs = [f"v_add_u32 v{VADDR}, s32, v{VBASE}"]
    for dt in range(1, 4):
        vs.append(f"v_xor_b32 v{VADDR+dt}, {dt*64}, v{VADDR}")
    for dt in range(4):
        for ks in range(2):
            f = AV + (dt*2+ks)*4
            vs.append(f"ds_read_b64_tr_b16 a[{f}:{f+1}], v{VADDR+dt} offset:{ks*4096}")
            vs.append(f"ds_read_b64_tr_b16 a[{f+2}:{f+3}], v{VADDR+dt} offset:{ks*4096+2048}")
    return vs

def issue(kind):
    srd = "s[16:19]" if kind == 'K' else "s[20:23]"
    off = "s33" if kind == 'K' else "s34"
    vs = []
    vs.append(f"s_mov_b32 m0, s32")
    vs.append(f"s_add_u32 s35, {off}, 4096")
    vs.append(f"s_add_u32 s36, s32, 4096")
    for half in range(2):
        so = off if half == 0 else "s35"
        if half == 1:
            vs.append("s_mov_b32 m0, s36")
            vs.append("s_nop 0")
        for p in range(4):
            vo = VOFFK + p if kind == 'K' else VOFFV
            vs.append(f"buffer_load_dwordx4 v{vo}, {srd}, {so} offen offset:{p*1024} lds")
    vs.append(f"s_add_u32 {off}, {off}, 32768")
    return vs

def wcnt(n):
    return 8 * min(4, NT - 1 - n)

def iteration(tag, n_v, n_k, iss_v, iss_k):
    interleave(qk_mfmas(0), [])
    vs = [f"s_waitcnt vmcnt({n_v})"] + vread() + ["s_nop 3"] + softmax(0, tag)
    interleave(qk_mfmas(1), vs, start=1)
    vs = ["s_nop 7", "s_nop 3"] + softmax(1, tag)
    interleave(qk_mfmas(2), vs, start=1)
    pre = ["s_waitcnt lgkmcnt(0)"]
    vs = []
    if iss_v:
        vs += issue('K')
    vs += slot_advance()
    for x in pre: e(x)
    vs2 = vs + ["s_nop 7"] + softmax(2, tag)
    interleave(pv_mfmas(0), vs2, start=0)
    vs = []
    if n_k is not None:
        vs += [f"s_waitcnt vmcnt({n_k})"] + kread() + ["s_waitcnt lgkmcnt(0)"]
        if iss_k:
            vs += issue('V')
        vs += slot_advance()
    e("s_nop 1")
    interleave(pv_mfmas(1) + pv_mfmas(2), vs, start=0)

def main():
    hdr = open("standalone__gqa_softmax__near_ridge.s.ref").read().split("\n")
    for line in hdr:
        if line.startswith("; @launch"):
            out.append("; @launch grid=(256,1,1) block=(256,1,1) lds=163840")
        elif line.startswith(";"):
            out.append(line)
        else:
            break
    out.append('.amdgcn_target "amdgcn-amd-amdhsa--gfx950"')
    out.append(".text")
    out.append(f".globl {NAME}_kernel")
    out.append(".p2align 8")
    out.append(f".type {NAME}_kernel,@function")
    lab(f"{NAME}_kernel")
    e("s_cmp_ge_u32 s2, 256")
    e("s_cbranch_scc1 L_END")
    e("s_load_dwordx4 s[4:7], s[0:1], 0")
    e("s_load_dwordx4 s[8:11], s[0:1], 16")
    e("s_lshr_b32 s28, s2, 4")
    e("s_lshl_b32 s28, s28, 3")
    e("s_and_b32 s29, s2, 7")
    e("s_add_u32 s28, s28, s29")
    e("s_lshr_b32 s29, s2, 3")
    e("s_and_b32 s29, s29, 1")
    e("v_lshrrev_b32 v1, 6, v0")
    e("s_nop 0")
    e("v_readfirstlane_b32 s30, v1")
    e("v_and_b32 v1, 63, v0")
    e("s_mul_i32 s31, s30, 40960")
    e("s_mov_b32 s32, s31")
    e("s_add_u32 s40, s31, 40960")
    e(f"s_mov_b32 s37, 0x{C_SCALE:08x}")
    e(f"s_mov_b32 s39, 0x{THR:08x}")
    e("s_lshl_b32 s33, s28, 19")
    e("s_lshl_b32 s34, s30, 13")
    e("s_add_u32 s33, s33, s34")
    e("s_mov_b32 s34, s33")
    e("s_lshl_b32 s41, s28, 1")
    e("s_add_u32 s41, s41, s29")
    e("s_mul_i32 s41, s41, 24576")
    e("s_add_u32 s42, s41, 8192")
    e("s_add_u32 s43, s41, 16384")
    e("v_lshrrev_b32 v184, 4, v1")
    e("v_and_b32 v185, 15, v1")
    for p in range(4):
        e(f"v_add_u32 v186, {4*p}, v184")
        e(f"v_xor_b32 v186, v186, v185")
        e(f"v_lshlrev_b32 v186, 4, v186")
        e(f"v_lshl_add_u32 v{VOFFK+p}, v184, 8, v186")
    e("v_lshlrev_b32 v186, 2, v184")
    e("v_xor_b32 v186, v186, v185")
    e("v_lshlrev_b32 v186, 4, v186")
    e(f"v_lshl_add_u32 v{VOFFV}, v184, 8, v186")
    e("v_and_b32 v186, 31, v1")
    e("v_lshrrev_b32 v187, 5, v1")
    e("v_xor_b32 v188, v187, v185")
    e("v_lshlrev_b32 v188, 4, v188")
    e(f"v_lshl_add_u32 v{KBASE}, v186, 8, v188")
    e("v_lshrrev_b32 v188, 2, v185")
    e("v_lshl_add_u32 v189, v187, 2, v188")
    e("v_lshlrev_b32 v189, 8, v189")
    e("v_lshl_add_u32 v189, v188, 6, v189")
    e("v_and_b32 v188, 1, v184")
    e("v_lshl_add_u32 v189, v188, 5, v189")
    e("v_and_b32 v188, 3, v1")
    e("v_lshl_add_u32 v189, v188, 3, v189")
    e(f"v_mov_b32 v{VBASE}, v189")
    e("v_lshlrev_b32 v9, 4, v187")
    e("v_lshl_add_u32 v9, v186, 8, v9")
    for t in range(3):
        e(f"v_mov_b32 v{M_+t}, 0xff800000")
        e(f"v_mov_b32 v{L_+t}, 0")
    e("s_waitcnt lgkmcnt(0)")
    for (d, s, n) in ((12, 4, 6291456), (16, 6, 67108864), (20, 8, 67108864), (24, 10, 6291456)):
        e(f"s_mov_b32 s{d}, s{s}")
        e(f"s_and_b32 s{d+1}, s{s+1}, 0xffff")
        e(f"s_mov_b32 s{d+2}, {n}")
        e(f"s_mov_b32 s{d+3}, 0x00020000")
    for t in range(3):
        so = ["s41", "s42", "s43"][t]
        for kk in range(8):
            q = Q0 + (t*8+kk)*4
            e(f"buffer_load_dwordx4 v[{q}:{q+3}], v9, s[12:15], {so} offen offset:{kk*32}")
    for n in range(5):
        for x in issue('K' if n % 2 == 0 else 'V'): e(x)
        for x in slot_advance(): e(x)
    for r in range(192):
        e(f"v_accvgpr_write_b32 a{r}, 0")
    e("s_waitcnt vmcnt(32)")
    for x in kread(): e(x)
    e("s_waitcnt lgkmcnt(0)")
    for x in issue('V'): e(x)
    for x in slot_advance(): e(x)
    e("s_mov_b32 s38, 0")
    lab("L_LOOP")
    iteration("L", 32, 32, True, True)
    e("s_add_u32 s38, s38, 1")
    e("s_cmp_lt_u32 s38, 13")
    e("s_cbranch_scc1 L_LOOP")
    iteration("T13", wcnt(27), wcnt(28), False, False)
    iteration("T14", wcnt(29), wcnt(30), False, False)
    iteration("T15", wcnt(31), None, False, False)
    for t in range(3):
        e(f"v_mov_b32 v{TMP+t}, v{L_+t}")
    e("s_nop 1")
    for t in range(3):
        e(f"v_permlane32_swap_b32 v{L_+t}, v{TMP+t}")
    e("s_nop 1")
    for t in range(3):
        e(f"v_add_f32 v{L_+t}, v{L_+t}, v{TMP+t}")
    e("v_lshlrev_b32 v184, 2, v1")
    e("v_add_u32 v185, s31, v184")
    for t in range(3):
        e(f"ds_write_b32 v185, v{M_+t} offset:{STATS+t*256}")
        e(f"ds_write_b32 v185, v{L_+t} offset:{STATS+768+t*256}")
    e("s_waitcnt lgkmcnt(0)")
    e("s_barrier")
    for w in range(4):
        e(f"v_add_u32 v{244+w}, {w*WREG}, v184")
    for w in range(4):
        for t in range(3):
            e(f"ds_read_b32 v{200+4*w+t}, v{244+w} offset:{STATS+t*256}")
            e(f"ds_read_b32 v{216+4*w+t}, v{244+w} offset:{STATS+768+t*256}")
    e("s_waitcnt lgkmcnt(0)")
    for t in range(3):
        M = 232 + t; Lr = 236 + t; g = 240 + t
        e(f"v_max_f32 v{M}, v{200+t}, v{204+t}")
        e(f"v_max3_f32 v{M}, v{M}, v{208+t}, v{212+t}")
        for w in range(4):
            e(f"v_sub_f32 v{200+4*w+t}, v{200+4*w+t}, v{M}")
            e(f"v_exp_f32 v{200+4*w+t}, v{200+4*w+t}")
        e("s_nop 0")
        e(f"v_mul_f32 v{Lr}, v{200+t}, v{216+t}")
        for w in range(1, 4):
            e(f"v_fmac_f32 v{Lr}, v{200+4*w+t}, v{216+4*w+t}")
        e(f"v_rcp_f32 v{Lr}, v{Lr}")
        e(f"v_sub_f32 v{g}, v{M_+t}, v{M}")
        e(f"v_exp_f32 v{g}, v{g}")
        e("s_nop 0")
        e(f"v_mul_f32 v{g}, v{g}, v{Lr}")
    for w in range(4):
        lab(f"L_EX{w}")
        if w < 3:
            e(f"s_cmp_lg_u32 s30, {w}")
            e(f"s_cbranch_scc1 L_EX{w+1}")
        e("v_lshlrev_b32 v184, 4, v1")
        for j in range(1, 4):
            d = (w + j) & 3
            si = 3 - j
            e(f"v_add_u32 v185, {d*WREG + si*12288}, v184")
            for t in range(3):
                for q in range(4):
                    a = AO + (t*4+d)*16 + q*4
                    b = 188 + 4*((t*4+q) & 1)
                    for r in range(4):
                        e(f"v_accvgpr_read_b32 v{b+r}, a{a+r}")
                    e("s_nop 0")
                    for r in range(4):
                        e(f"v_mul_f32 v{b+r}, v{b+r}, v{240+t}")
                    e(f"ds_write_b128 v185, v[{b}:{b+3}] offset:{(t*4+q)*1024}")
        e("s_waitcnt lgkmcnt(0)")
        e("s_barrier")
        e(f"v_add_u32 v185, {w*WREG}, v184")
        e("v_and_b32 v186, 31, v1")
        e("v_lshrrev_b32 v187, 5, v1")
        e("v_lshlrev_b32 v186, 8, v186")
        e("v_lshl_add_u32 v186, v187, 3, v186")
        for t in range(3):
            so = ["s41", "s42", "s43"][t]
            for q in range(4):
                for si in range(3):
                    e(f"ds_read_b128 v[{200+4*si}:{203+4*si}], v185 offset:{si*12288+(t*4+q)*1024}")
                a = AO + (t*4+w)*16 + q*4
                for r in range(4):
                    e(f"v_accvgpr_read_b32 v{188+r}, a{a+r}")
                e("s_waitcnt lgkmcnt(0)")
                for r in range(4):
                    e(f"v_fma_f32 v{188+r}, v{188+r}, v{240+t}, v{200+r}")
                for r in range(4):
                    e(f"v_add_f32 v{188+r}, v{188+r}, v{204+r}")
                for r in range(4):
                    e(f"v_add_f32 v{188+r}, v{188+r}, v{208+r}")
                e(f"v_cvt_pk_bf16_f32 v192, v188, v189")
                e(f"v_cvt_pk_bf16_f32 v193, v190, v191")
                e(f"buffer_store_dwordx2 v[192:193], v186, s[24:27], {so} offen offset:{w*64+q*16}")
                e("s_nop 1")
        e("s_branch L_END")
    lab("L_END")
    e("s_endpgm")
    for h in handlers:
        for x in h:
            if x.endswith(":"): out.append(x)
            else: e(x)
    out.append('.section .rodata,"a"')
    out.append(".p2align 6")
    out.append(f".amdhsa_kernel {NAME}_kernel")
    out.append("  .amdhsa_next_free_vgpr 512")
    out.append("  .amdhsa_next_free_sgpr 102")
    out.append("  .amdhsa_accum_offset 256")
    out.append("  .amdhsa_group_segment_fixed_size 0")
    out.append("  .amdhsa_kernarg_size 48")
    out.append("  .amdhsa_user_sgpr_count 2")
    out.append("  .amdhsa_user_sgpr_kernarg_segment_ptr 1")
    out.append("  .amdhsa_system_sgpr_workgroup_id_x 1")
    out.append(".end_amdhsa_kernel")

main()
txt = "\n".join(("    " + x if (not x.startswith(" ") and not x.endswith(":") and not x.startswith(";") and not x.startswith(".") and False) else x) for x in out) + "\n"
open(sys.argv[1] if len(sys.argv) > 1 else "standalone__gqa_softmax__near_ridge.s", "w").write(txt)
```

```python
import struct, sys, math, os
NOCOMP = os.environ.get('NOCOMP') == '1'
STAMP = os.environ.get('STAMP') == '1'
CP = os.environ.get('CP', 'nt')

NAME = "standalone__gqa_softmax__near_ridge"
NSLOT = 5
SLOTB = 8192
WREG = NSLOT * SLOTB
STATS = 38912
NT = 32

def fbits(x): return struct.unpack("<I", struct.pack("<f", x))[0]
C_SCALE = fbits((128 ** -0.5) * math.log2(math.e))
THR = fbits(8.0)

Q0 = 16; S0 = 112; P0 = 160
VOFFK = 2; VOFFV = 6; KBASE = 7; VBASE = 8
M_ = 10; L_ = 13
KADDR = 184; VADDR = 192; TMP = 196
AO = 0; AK = 192; AV = 224

out = []
def e(s): out.append("    " + s)
def lab(s): out.append(s + ":")

def interleave(ms, vs, start=0):
    n = len(ms)
    slots = max(1, n - start)
    vi = 0
    for i, m in enumerate(ms):
        e(m)
        if i >= start:
            k = i - start + 1
            tgt = (len(vs) * k + slots - 1) // slots
            while vi < tgt:
                e(vs[vi]); vi += 1
    while vi < len(vs):
        e(vs[vi]); vi += 1

def qk_mfmas(t):
    ms = []
    for kk in range(8):
        c = "0" if kk == 0 else f"v[{S0+16*t}:{S0+16*t+15}]"
        ms.append(f"v_mfma_f32_32x32x16_bf16 v[{S0+16*t}:{S0+16*t+15}], a[{AK+4*kk}:{AK+4*kk+3}], v[{Q0+(t*8+kk)*4}:{Q0+(t*8+kk)*4+3}], {c}")
    return ["s_nop 0"] if NOCOMP else ms

def pv_mfmas(t):
    ms = []
    for ks in range(2):
        for dt in range(4):
            o = AO + (t*4+dt)*16
            f = AV + (dt*2+ks)*4
            p = P0 + t*8 + ks*4
            ms.append(f"v_mfma_f32_32x32x16_bf16 a[{o}:{o+15}], a[{f}:{f+3}], v[{p}:{p+3}], a[{o}:{o+15}]")
    return ["s_nop 0"] if NOCOMP else ms

handlers = []
def softmax_a(t, tag, first):
    s = S0 + 16*t
    mx = TMP + 4*t; t1 = mx + 1; t2 = mx + 2; f = mx + 3
    m = M_ + t; l = L_ + t
    vs = []
    vs.append(f"v_max3_f32 v{mx}, v{s}, v{s+1}, v{s+2}")
    vs.append(f"v_max3_f32 v{t1}, v{s+3}, v{s+4}, v{s+5}")
    vs.append(f"v_max3_f32 v{mx}, v{mx}, v{s+6}, v{s+7}")
    vs.append(f"v_max3_f32 v{t1}, v{t1}, v{s+8}, v{s+9}")
    vs.append(f"v_max3_f32 v{mx}, v{mx}, v{s+10}, v{s+11}")
    vs.append(f"v_max3_f32 v{t1}, v{t1}, v{s+12}, v{s+13}")
    vs.append(f"v_max3_f32 v{mx}, v{mx}, v{s+14}, v{s+15}")
    vs.append(f"v_max_f32 v{mx}, v{mx}, v{t1}")
    vs.append(f"v_mov_b32 v{t1}, v{mx}")
    vs.append(f"s_nop 1")
    vs.append(f"v_permlane32_swap_b32 v{mx}, v{t1}")
    vs.append(f"s_nop 1")
    vs.append(f"v_max_f32 v{mx}, v{mx}, v{t1}")
    vs.append(f"v_mul_f32 v{mx}, s37, v{mx}")
    if first:
        vs.append(f"v_mov_b32 v{m}, v{mx}")
    else:
        vs.append(f"v_sub_f32 v{t1}, v{mx}, v{m}")
        vs.append(f"v_cmp_lt_f32 vcc, s39, v{t1}")
        vs.append(f"s_nop 4")
        vs.append(f"s_cbranch_vccnz RESC_{tag}_{t}")
        vs.append(f"RET_{tag}_{t}:")
        h = [f"RESC_{tag}_{t}:"]
        h.append(f"v_max_f32 v{t1}, v{m}, v{mx}")
        h.append(f"v_sub_f32 v{f}, v{m}, v{t1}")
        h.append(f"v_exp_f32 v{f}, v{f}")
        h.append(f"v_mov_b32 v{m}, v{t1}")
        h.append(f"s_nop 0")
        h.append(f"v_mul_f32 v{l}, v{l}, v{f}")
        for r in range(0, 64, 2):
            a = AO + t*64 + r
            h.append(f"v_accvgpr_read_b32 v{t1}, a{a}")
            h.append(f"v_accvgpr_read_b32 v{t2}, a{a+1}")
            h.append(f"s_nop 0")
            h.append(f"v_mul_f32 v{t1}, v{t1}, v{f}")
            h.append(f"v_mul_f32 v{t2}, v{t2}, v{f}")
            h.append(f"v_accvgpr_write_b32 a{a}, v{t1}")
            h.append(f"v_accvgpr_write_b32 a{a+1}, v{t2}")
        h.append(f"s_nop 1")
        h.append(f"s_branch RET_{tag}_{t}")
        handlers.append(h)
    for r in range(16):
        vs.append(f"v_fma_f32 v{s+r}, v{s+r}, s37, -v{m}")
    return [] if NOCOMP else vs

def softmax_b(t):
    s = S0 + 16*t
    mx = TMP + 4*t; t1 = mx + 1; t2 = mx + 2
    l = L_ + t
    vs = []
    for r in range(16):
        vs.append(f"v_exp_f32 v{s+r}, v{s+r}")
    for r in range(0, 16, 2):
        vs.append(f"v_cvt_pk_bf16_f32 v{P0+t*8+r//2}, v{s+r}, v{s+r+1}")
    vs.append(f"v_add_f32 v{t1}, v{s}, v{s+1}")
    vs.append(f"v_add_f32 v{t2}, v{s+2}, v{s+3}")
    for r in range(4, 16, 2):
        vs.append(f"v_add_f32 v{t1}, v{t1}, v{s+r}")
        vs.append(f"v_add_f32 v{t2}, v{t2}, v{s+r+1}")
    vs.append(f"v_add_f32 v{t1}, v{t1}, v{t2}")
    vs.append(f"v_add_f32 v{l}, v{l}, v{t1}")
    return [] if NOCOMP else vs

def stamp(idx):
    if not STAMP: return
    e("s_memtime s[44:45]")
    e("s_waitcnt lgkmcnt(0)")
    if isinstance(idx, str):
        e(f"s_mov_b32 m0, {idx}")
        e("s_nop 0")
        e("v_writelane_b32 v250, s44, m0")
    else:
        e(f"v_writelane_b32 v250, s44, {idx}")

def slot_advance():
    return ["s_add_u32 s32, s32, 8192",
            "s_cmp_eq_u32 s32, s40",
            "s_cselect_b32 s32, s31, s32"]

def kread():
    vs = [f"v_add_u32 v{KADDR}, s32, v{KBASE}"]
    for kk in range(1, 8):
        vs.append(f"v_xor_b32 v{KADDR+kk}, {kk*32}, v{KADDR}")
    for kk in range(8):
        vs.append(f"ds_read_b128 a[{AK+4*kk}:{AK+4*kk+3}], v{KADDR+kk}")
    return vs

def vread():
    vs = [f"v_add_u32 v{VADDR}, s32, v{VBASE}"]
    for dt in range(1, 4):
        vs.append(f"v_xor_b32 v{VADDR+dt}, {dt*64}, v{VADDR}")
    for ks in range(2):
        for dt in range(4):
            f = AV + (dt*2+ks)*4
            vs.append(f"ds_read_b64_tr_b16 a[{f}:{f+1}], v{VADDR+dt} offset:{ks*4096}")
            vs.append(f"ds_read_b64_tr_b16 a[{f+2}:{f+3}], v{VADDR+dt} offset:{ks*4096+2048}")
    return vs

def issue(kind):
    srd = "s[16:19]" if kind == 'K' else "s[20:23]"
    offw = "s33" if kind == 'K' else "s34"
    vs = []
    vs.append(f"s_mov_b32 m0, s32")
    vs.append(f"s_add_u32 s47, {offw}, s52")
    vs.append(f"s_add_u32 s35, s47, 4096")
    vs.append(f"s_add_u32 s36, s32, 4096")
    for half in range(2):
        so = "s47" if half == 0 else "s35"
        if half == 1:
            vs.append("s_mov_b32 m0, s36")
            vs.append("s_nop 0")
        for p in range(4):
            vo = VOFFK + p if kind == 'K' else VOFFV
            vs.append(f"buffer_load_dwordx4 v{vo}, {srd}, {so} offen offset:{p*1024} {CP} lds")
    vs.append(f"s_add_u32 {offw}, {offw}, 32768")
    vs.append(f"s_and_b32 {offw}, {offw}, 0x7ffff")
    return vs

def wcnt(n):
    return 8 * min(4, NT - 1 - n)

def iteration(tag, i):
    first = (i == 0)
    last = (i == 15)
    vs = [] if first else softmax_b(2)
    interleave(qk_mfmas(0), vs)
    vs = []
    if 2*i + 5 <= NT - 1:
        vs += issue('V')
    vs += slot_advance()
    vs += ["s_nop 7", "s_nop 3"]
    vs += softmax_a(0, tag, first)
    if first:
        for x in vs: e(x)
    else:
        interleave(pv_mfmas(2), vs)
    vs = [f"s_waitcnt vmcnt({wcnt(2*i+1)})"] + vread() + softmax_b(0) + ["s_waitcnt lgkmcnt(0)"]
    interleave(qk_mfmas(1), vs)
    vs = []
    if 2*i + 6 <= NT - 1:
        vs += issue('K')
    vs += slot_advance()
    vs += ["s_nop 7"]
    vs += softmax_a(1, tag, first)
    interleave(pv_mfmas(0), vs)
    vs = softmax_b(1)
    interleave(qk_mfmas(2), vs)
    vs = []
    if not last:
        vs += [f"s_waitcnt vmcnt({wcnt(2*i+2)})"] + kread()
    else:
        vs += ["s_nop 7", "s_nop 3"]
    vs += softmax_a(2, tag, first)
    if not last:
        vs += ["s_waitcnt lgkmcnt(0)"]
    interleave(pv_mfmas(1), vs)

def main():
    hdr = open("standalone__gqa_softmax__near_ridge.s.ref").read().split("\n")
    for line in hdr:
        if line.startswith("; @launch"):
            out.append("; @launch grid=(256,1,1) block=(256,1,1) lds=163840")
        elif line.startswith(";"):
            out.append(line)
        else:
            break
    out.append('.amdgcn_target "amdgcn-amd-amdhsa--gfx950"')
    out.append(".text")
    out.append(f".globl {NAME}_kernel")
    out.append(".p2align 8")
    out.append(f".type {NAME}_kernel,@function")
    lab(f"{NAME}_kernel")
    e("s_cmp_ge_u32 s2, 256")
    e("s_cbranch_scc1 L_END")
    if STAMP: e("v_mov_b32 v250, 0")
    stamp(0)
    e("s_load_dwordx4 s[4:7], s[0:1], 0")
    e("s_load_dwordx4 s[8:11], s[0:1], 16")
    e("s_lshr_b32 s28, s2, 4")
    e("s_lshl_b32 s28, s28, 3")
    e("s_and_b32 s29, s2, 7")
    e("s_add_u32 s28, s28, s29")
    e("s_lshr_b32 s29, s2, 3")
    e("s_and_b32 s29, s29, 1")
    e("v_lshrrev_b32 v1, 6, v0")
    e("s_nop 0")
    e("v_readfirstlane_b32 s30, v1")
    e("v_and_b32 v1, 63, v0")
    e("s_mul_i32 s31, s30, 40960")
    e("s_mov_b32 s32, s31")
    e("s_add_u32 s40, s31, 40960")
    e(f"s_mov_b32 s37, 0x{C_SCALE:08x}")
    e(f"s_mov_b32 s39, 0x{THR:08x}")
    e("s_lshl_b32 s52, s28, 19")
    e("s_lshl_b32 s33, s30, 13")
    e("s_mov_b32 s34, s33")
    e("s_lshl_b32 s41, s28, 1")
    e("s_add_u32 s41, s41, s29")
    e("s_mul_i32 s41, s41, 24576")
    e("s_add_u32 s42, s41, 8192")
    e("s_add_u32 s43, s41, 16384")
    e("v_lshrrev_b32 v184, 4, v1")
    e("v_and_b32 v185, 15, v1")
    for p in range(4):
        e(f"v_add_u32 v186, {4*p}, v184")
        e(f"v_xor_b32 v186, v186, v185")
        e(f"v_lshlrev_b32 v186, 4, v186")
        e(f"v_lshl_add_u32 v{VOFFK+p}, v184, 8, v186")
    e("v_lshlrev_b32 v186, 2, v184")
    e("v_xor_b32 v186, v186, v185")
    e("v_lshlrev_b32 v186, 4, v186")
    e(f"v_lshl_add_u32 v{VOFFV}, v184, 8, v186")
    e("v_and_b32 v186, 31, v1")
    e("v_lshrrev_b32 v187, 5, v1")
    e("v_xor_b32 v188, v187, v185")
    e("v_lshlrev_b32 v188, 4, v188")
    e(f"v_lshl_add_u32 v{KBASE}, v186, 8, v188")
    e("v_lshrrev_b32 v188, 2, v185")
    e("v_lshl_add_u32 v189, v187, 2, v188")
    e("v_lshlrev_b32 v189, 8, v189")
    e("v_lshl_add_u32 v189, v188, 6, v189")
    e("v_and_b32 v188, 1, v184")
    e("v_lshl_add_u32 v189, v188, 5, v189")
    e("v_and_b32 v188, 3, v1")
    e("v_lshl_add_u32 v189, v188, 3, v189")
    e(f"v_mov_b32 v{VBASE}, v189")
    e("v_lshlrev_b32 v9, 4, v187")
    e("v_lshl_add_u32 v9, v186, 8, v9")
    for t in range(3):
        e(f"v_mov_b32 v{L_+t}, 0")
    e("s_waitcnt lgkmcnt(0)")
    for (d, s, n) in ((12, 4, 6291456), (16, 6, 67108864), (20, 8, 67108864), (24, 10, 6291456)):
        e(f"s_mov_b32 s{d}, s{s}")
        e(f"s_and_b32 s{d+1}, s{s+1}, 0xffff")
        e(f"s_mov_b32 s{d+2}, {n}")
        e(f"s_mov_b32 s{d+3}, 0x00020000")
    for x in issue('K'): e(x)
    for x in slot_advance(): e(x)
    for t in range(3):
        so = ["s41", "s42", "s43"][t]
        for kk in range(8):
            q = Q0 + (t*8+kk)*4
            e(f"buffer_load_dwordx4 v[{q}:{q+3}], v9, s[12:15], {so} offen offset:{kk*32}")
    for n in range(1, 5):
        for x in issue('K' if n % 2 == 0 else 'V'): e(x)
        for x in slot_advance(): e(x)
    for r in range(192):
        e(f"v_accvgpr_write_b32 a{r}, 0")
    e("s_waitcnt vmcnt(32)")
    for x in kread(): e(x)
    e("s_waitcnt lgkmcnt(0)")
    stamp(1)
    iteration("T0", 0)
    stamp(2)
    e("s_mov_b32 s38, 1")
    lab("L_LOOP")
    iteration("L", 1)
    if STAMP:
        e("s_add_u32 s46, s38, 2")
        stamp("s46")
    e("s_add_u32 s38, s38, 1")
    e("s_cmp_lt_u32 s38, 13")
    e("s_cbranch_scc1 L_LOOP")
    iteration("T13", 13)
    stamp(15)
    iteration("T14", 14)
    stamp(16)
    iteration("T15", 15)
    for x in softmax_b(2): e(x)
    e("s_nop 1")
    for x in pv_mfmas(2): e(x)
    stamp(17)
    for t in range(3):
        e(f"v_mov_b32 v{TMP+t}, v{L_+t}")
    e("s_nop 1")
    for t in range(3):
        e(f"v_permlane32_swap_b32 v{L_+t}, v{TMP+t}")
    e("s_nop 1")
    for t in range(3):
        e(f"v_add_f32 v{L_+t}, v{L_+t}, v{TMP+t}")
    e("v_lshlrev_b32 v184, 2, v1")
    e("v_add_u32 v185, s31, v184")
    for t in range(3):
        e(f"ds_write_b32 v185, v{M_+t} offset:{STATS+t*256}")
        e(f"ds_write_b32 v185, v{L_+t} offset:{STATS+768+t*256}")
    for w in range(4):
        e(f"v_add_u32 v{244+w}, {w*WREG}, v184")
    e("s_waitcnt lgkmcnt(0)")
    e("s_barrier")
    for w in range(4):
        for t in range(3):
            e(f"ds_read_b32 v{200+4*w+t}, v{244+w} offset:{STATS+t*256}")
            e(f"ds_read_b32 v{216+4*w+t}, v{244+w} offset:{STATS+768+t*256}")
    e("s_waitcnt lgkmcnt(0)")
    for t in range(3):
        M = 232 + t; Lr = 236 + t; g = 240 + t
        e(f"v_max_f32 v{M}, v{200+t}, v{204+t}")
        e(f"v_max3_f32 v{M}, v{M}, v{208+t}, v{212+t}")
        for w in range(4):
            e(f"v_sub_f32 v{200+4*w+t}, v{200+4*w+t}, v{M}")
            e(f"v_exp_f32 v{200+4*w+t}, v{200+4*w+t}")
        e("s_nop 0")
        e(f"v_mul_f32 v{Lr}, v{200+t}, v{216+t}")
        for w in range(1, 4):
            e(f"v_fmac_f32 v{Lr}, v{200+4*w+t}, v{216+4*w+t}")
        e(f"v_rcp_f32 v{Lr}, v{Lr}")
        e(f"v_sub_f32 v{g}, v{M_+t}, v{M}")
        e(f"v_exp_f32 v{g}, v{g}")
        e("s_nop 0")
        e(f"v_mul_f32 v{g}, v{g}, v{Lr}")
    for w in range(4):
        lab(f"L_EX{w}")
        if w < 3:
            e(f"s_cmp_lg_u32 s30, {w}")
            e(f"s_cbranch_scc1 L_EX{w+1}")
        e("v_lshlrev_b32 v248, 4, v1")
        for j in range(1, 4):
            d = (w + j) & 3
            si = 3 - j
            e(f"v_add_u32 v249, {d*WREG + si*12288}, v248")
            for t in range(3):
                for q in range(4):
                    a = AO + (t*4+d)*16 + q*4
                    b = 16 + 4*((j*12 + t*4+q) % 8)
                    for r in range(4):
                        e(f"v_accvgpr_read_b32 v{b+r}, a{a+r}")
                    for r in range(4):
                        e(f"v_mul_f32 v{b+r}, v{b+r}, v{240+t}")
                    e(f"ds_write_b128 v249, v[{b}:{b+3}] offset:{(t*4+q)*1024}")
        for t in range(3):
            for q in range(4):
                a = AO + (t*4+w)*16 + q*4
                b = 48 + (t*4+q)*4
                for r in range(4):
                    e(f"v_accvgpr_read_b32 v{b+r}, a{a+r}")
                for r in range(4):
                    e(f"v_mul_f32 v{b+r}, v{b+r}, v{240+t}")
        e(f"v_add_u32 v249, {w*WREG}, v248")
        e("v_and_b32 v247, 31, v1")
        e("v_lshrrev_b32 v246, 5, v1")
        e("v_lshlrev_b32 v247, 8, v247")
        e("v_lshl_add_u32 v247, v246, 3, v247")
        e("s_waitcnt lgkmcnt(0)")
        e("s_barrier")
        for si in range(3):
            for t in range(3):
                for q in range(4):
                    b = 96 + (si*12 + t*4+q)*4
                    e(f"ds_read_b128 v[{b}:{b+3}], v249 offset:{si*12288+(t*4+q)*1024}")
        for t in range(3):
            so = ["s41", "s42", "s43"][t]
            for q in range(4):
                k = t*4+q
                e(f"s_waitcnt lgkmcnt({min(15, 35 - 24 - k)})") if True else None
                o = 48 + k*4
                for si in range(3):
                    b = 96 + (si*12 + k)*4
                    for r in range(4):
                        e(f"v_add_f32 v{o+r}, v{o+r}, v{b+r}")
                e(f"v_cvt_pk_bf16_f32 v{o}, v{o}, v{o+1}")
                e(f"v_cvt_pk_bf16_f32 v{o+1}, v{o+2}, v{o+3}")
                e(f"buffer_store_dwordx2 v[{o}:{o+1}], v247, s[24:27], {so} offen offset:{w*64+q*16}")
        e("s_branch L_FIN" if STAMP else "s_branch L_END")
    if STAMP:
        lab("L_FIN")
        stamp(18)
        e("s_cmp_lg_u32 s2, " + os.environ.get('STAMPWG', '0'))
        e("s_cbranch_scc1 L_END")
        e("s_cmp_lg_u32 s30, 0")
        e("s_cbranch_scc1 L_END")
        e("s_load_dwordx2 s[48:49], s[0:1], 32")
        e("s_waitcnt lgkmcnt(0)")
        e("s_mov_b32 s50, 256")
        e("s_mov_b32 s51, 0x00020000")
        e("v_lshlrev_b32 v251, 2, v1")
        e("buffer_store_dword v250, v251, s[48:51], 0 offen")
    lab("L_END")
    e("s_endpgm")
    for h in handlers:
        for x in h:
            if x.endswith(":"): out.append(x)
            else: e(x)
    out.append('.section .rodata,"a"')
    out.append(".p2align 6")
    out.append(f".amdhsa_kernel {NAME}_kernel")
    out.append("  .amdhsa_next_free_vgpr 512")
    out.append("  .amdhsa_next_free_sgpr 102")
    out.append("  .amdhsa_accum_offset 256")
    out.append("  .amdhsa_group_segment_fixed_size 0")
    out.append("  .amdhsa_kernarg_size 48")
    out.append("  .amdhsa_user_sgpr_count 2")
    out.append("  .amdhsa_user_sgpr_kernarg_segment_ptr 1")
    out.append("  .amdhsa_system_sgpr_workgroup_id_x 1")
    out.append(".end_amdhsa_kernel")

main()
open(sys.argv[1] if len(sys.argv) > 1 else "standalone__gqa_softmax__near_ridge.s", "w").write("\n".join(out) + "\n")
```

```python
import struct, sys, math, os
NOCOMP = os.environ.get('NOCOMP') == '1'
STAMP = os.environ.get('STAMP') == '1'
CP = os.environ.get('CP', 'nt')

NAME = "standalone__gqa_softmax__near_ridge"
NSLOT = 5
SLOTB = 8192
WREG = NSLOT * SLOTB
STATS = 38912
NT = 32

def fbits(x): return struct.unpack("<I", struct.pack("<f", x))[0]
C_SCALE = fbits((128 ** -0.5) * math.log2(math.e))
THR = fbits(8.0)

Q0 = 16; S0 = 112; P0 = 160
VOFFK = 2; VOFFV = 6; KBASE = 7; VBASE = 8
M_ = 10; L_ = 13
KADDR = 184; VADDR = 192; TMP = 196
AO = 0; AK = 192; AV = 224

out = []
def e(s): out.append("    " + s)
def lab(s): out.append(s + ":")

def interleave(ms, vs, start=0):
    n = len(ms)
    slots = max(1, n - start)
    vi = 0
    for i, m in enumerate(ms):
        e(m)
        if i >= start:
            k = i - start + 1
            tgt = (len(vs) * k + slots - 1) // slots
            while vi < tgt:
                e(vs[vi]); vi += 1
    while vi < len(vs):
        e(vs[vi]); vi += 1

def qk_mfmas(t):
    ms = []
    for kk in range(8):
        c = "0" if kk == 0 else f"v[{S0+16*t}:{S0+16*t+15}]"
        ms.append(f"v_mfma_f32_32x32x16_bf16 v[{S0+16*t}:{S0+16*t+15}], a[{AK+4*kk}:{AK+4*kk+3}], v[{Q0+(t*8+kk)*4}:{Q0+(t*8+kk)*4+3}], {c}")
    return ["s_nop 0"] if NOCOMP else ms

def pv_mfmas(t):
    ms = []
    for ks in range(2):
        for dt in range(4):
            o = AO + (t*4+dt)*16
            f = AV + (dt*2+ks)*4
            p = P0 + t*8 + ks*4
            ms.append(f"v_mfma_f32_32x32x16_bf16 a[{o}:{o+15}], a[{f}:{f+3}], v[{p}:{p+3}], a[{o}:{o+15}]")
    return ["s_nop 0"] if NOCOMP else ms

handlers = []
def softmax_a(t, tag, first):
    s = S0 + 16*t
    mx = TMP + 4*t; t1 = mx + 1; t2 = mx + 2; f = mx + 3
    m = M_ + t; l = L_ + t
    vs = []
    vs.append(f"v_max3_f32 v{mx}, v{s}, v{s+1}, v{s+2}")
    vs.append(f"v_max3_f32 v{t1}, v{s+3}, v{s+4}, v{s+5}")
    vs.append(f"v_max3_f32 v{mx}, v{mx}, v{s+6}, v{s+7}")
    vs.append(f"v_max3_f32 v{t1}, v{t1}, v{s+8}, v{s+9}")
    vs.append(f"v_max3_f32 v{mx}, v{mx}, v{s+10}, v{s+11}")
    vs.append(f"v_max3_f32 v{t1}, v{t1}, v{s+12}, v{s+13}")
    vs.append(f"v_max3_f32 v{mx}, v{mx}, v{s+14}, v{s+15}")
    vs.append(f"v_max_f32 v{mx}, v{mx}, v{t1}")
    vs.append(f"v_mov_b32 v{t1}, v{mx}")
    vs.append(f"s_nop 1")
    vs.append(f"v_permlane32_swap_b32 v{mx}, v{t1}")
    vs.append(f"s_nop 1")
    vs.append(f"v_max_f32 v{mx}, v{mx}, v{t1}")
    vs.append(f"v_mul_f32 v{mx}, s37, v{mx}")
    if first:
        vs.append(f"v_mov_b32 v{m}, v{mx}")
    else:
        vs.append(f"v_sub_f32 v{t1}, v{mx}, v{m}")
        vs.append(f"v_cmp_lt_f32 vcc, s39, v{t1}")
        vs.append(f"s_nop 4")
        vs.append(f"s_cbranch_vccnz RESC_{tag}_{t}")
        vs.append(f"RET_{tag}_{t}:")
        h = [f"RESC_{tag}_{t}:"]
        h.append(f"v_max_f32 v{t1}, v{m}, v{mx}")
        h.append(f"v_sub_f32 v{f}, v{m}, v{t1}")
        h.append(f"v_exp_f32 v{f}, v{f}")
        h.append(f"v_mov_b32 v{m}, v{t1}")
        h.append(f"s_nop 0")
        h.append(f"v_mul_f32 v{l}, v{l}, v{f}")
        h.append(f"s_cmp_eq_u32 s38, 0")
        h.append(f"s_cbranch_scc1 RET_{tag}_{t}")
        for r in range(0, 64, 2):
            a = AO + t*64 + r
            h.append(f"v_accvgpr_read_b32 v{t1}, a{a}")
            h.append(f"v_accvgpr_read_b32 v{t2}, a{a+1}")
            h.append(f"s_nop 0")
            h.append(f"v_mul_f32 v{t1}, v{t1}, v{f}")
            h.append(f"v_mul_f32 v{t2}, v{t2}, v{f}")
            h.append(f"v_accvgpr_write_b32 a{a}, v{t1}")
            h.append(f"v_accvgpr_write_b32 a{a+1}, v{t2}")
        h.append(f"s_nop 1")
        h.append(f"s_branch RET_{tag}_{t}")
        handlers.append(h)
    for r in range(16):
        vs.append(f"v_fma_f32 v{s+r}, v{s+r}, s37, -v{m}")
    return [] if NOCOMP else vs

def softmax_b(t):
    s = S0 + 16*t
    mx = TMP + 4*t; t1 = mx + 1; t2 = mx + 2
    l = L_ + t
    vs = []
    for r in range(16):
        vs.append(f"v_exp_f32 v{s+r}, v{s+r}")
    for r in range(0, 16, 2):
        vs.append(f"v_cvt_pk_bf16_f32 v{P0+t*8+r//2}, v{s+r}, v{s+r+1}")
    vs.append(f"v_add_f32 v{t1}, v{s}, v{s+1}")
    vs.append(f"v_add_f32 v{t2}, v{s+2}, v{s+3}")
    for r in range(4, 16, 2):
        vs.append(f"v_add_f32 v{t1}, v{t1}, v{s+r}")
        vs.append(f"v_add_f32 v{t2}, v{t2}, v{s+r+1}")
    vs.append(f"v_add_f32 v{t1}, v{t1}, v{t2}")
    vs.append(f"v_add_f32 v{l}, v{l}, v{t1}")
    return [] if NOCOMP else vs

def stamp(idx):
    if not STAMP: return
    e("s_memtime s[44:45]")
    e("s_waitcnt lgkmcnt(0)")
    if isinstance(idx, str):
        e(f"s_mov_b32 m0, {idx}")
        e("s_nop 0")
        e("v_writelane_b32 v250, s44, m0")
    else:
        e(f"v_writelane_b32 v250, s44, {idx}")

def slot_advance():
    return ["s_add_u32 s32, s32, 8192",
            "s_cmp_eq_u32 s32, s40",
            "s_cselect_b32 s32, s31, s32"]

def kread():
    vs = [f"v_add_u32 v{KADDR}, s32, v{KBASE}"]
    for kk in range(1, 8):
        vs.append(f"v_xor_b32 v{KADDR+kk}, {kk*32}, v{KADDR}")
    for kk in range(8):
        vs.append(f"ds_read_b128 a[{AK+4*kk}:{AK+4*kk+3}], v{KADDR+kk}")
    return vs

def vread():
    vs = [f"v_add_u32 v{VADDR}, s32, v{VBASE}"]
    for dt in range(1, 4):
        vs.append(f"v_xor_b32 v{VADDR+dt}, {dt*64}, v{VADDR}")
    for ks in range(2):
        for dt in range(4):
            f = AV + (dt*2+ks)*4
            vs.append(f"ds_read_b64_tr_b16 a[{f}:{f+1}], v{VADDR+dt} offset:{ks*4096}")
            vs.append(f"ds_read_b64_tr_b16 a[{f+2}:{f+3}], v{VADDR+dt} offset:{ks*4096+2048}")
    return vs

def issue(kind, lim=None):
    srd = "s[16:19]" if kind == 'K' else "s[20:23]"
    offw = "s33" if kind == 'K' else "s34"
    vs = []
    vs.append(f"s_mov_b32 m0, s32")
    vs.append(f"s_add_u32 s47, {offw}, s52")
    if lim is not None:
        vs.append(f"s_cmp_lt_u32 s38, {lim}")
        vs.append(f"s_cselect_b32 s47, s47, s53")
    vs.append(f"s_add_u32 s35, s47, 4096")
    vs.append(f"s_add_u32 s36, s32, 4096")
    for half in range(2):
        so = "s47" if half == 0 else "s35"
        if half == 1:
            vs.append("s_mov_b32 m0, s36")
            vs.append("s_nop 0")
        for p in range(4):
            vo = VOFFK + p if kind == 'K' else VOFFV
            vs.append(f"buffer_load_dwordx4 v{vo}, {srd}, {so} offen offset:{p*1024} {CP} lds")
    vs.append(f"s_add_u32 {offw}, {offw}, 32768")
    return vs

def wcnt(n):
    return 8 * min(4, NT - 1 - n)

def iteration(tag):
    first = False
    interleave(qk_mfmas(0), softmax_b(2))
    vs = issue('V', 14) + slot_advance() + softmax_a(0, tag, first)
    interleave(pv_mfmas(2), vs)
    vs = [f"s_waitcnt vmcnt(32)"] + vread() + softmax_b(0) + ["s_waitcnt lgkmcnt(0)"]
    interleave(qk_mfmas(1), vs)
    vs = issue('K', 13) + slot_advance() + softmax_a(1, tag, first)
    interleave(pv_mfmas(0), vs)
    interleave(qk_mfmas(2), softmax_b(1))
    vs = [f"s_waitcnt vmcnt(32)"] + kread() + softmax_a(2, tag, first) + ["s_waitcnt lgkmcnt(0)"]
    interleave(pv_mfmas(1), vs)

def main():
    hdr = open("standalone__gqa_softmax__near_ridge.s.ref").read().split("\n")
    for line in hdr:
        if line.startswith("; @launch"):
            out.append("; @launch grid=(256,1,1) block=(256,1,1) lds=163840")
        elif line.startswith(";"):
            out.append(line)
        else:
            break
    out.append('.amdgcn_target "amdgcn-amd-amdhsa--gfx950"')
    out.append(".text")
    out.append(f".globl {NAME}_kernel")
    out.append(".p2align 8")
    out.append(f".type {NAME}_kernel,@function")
    lab(f"{NAME}_kernel")
    e("s_cmp_ge_u32 s2, 256")
    e("s_cbranch_scc1 L_END")
    if STAMP: e("v_mov_b32 v250, 0")
    stamp(0)
    e("s_load_dwordx4 s[4:7], s[0:1], 0")
    e("s_load_dwordx4 s[8:11], s[0:1], 16")
    e("s_lshr_b32 s28, s2, 4")
    e("s_lshl_b32 s28, s28, 3")
    e("s_and_b32 s29, s2, 7")
    e("s_add_u32 s28, s28, s29")
    e("s_lshr_b32 s29, s2, 3")
    e("s_and_b32 s29, s29, 1")
    e("v_lshrrev_b32 v1, 6, v0")
    e("s_nop 0")
    e("v_readfirstlane_b32 s30, v1")
    e("v_and_b32 v1, 63, v0")
    e("s_mul_i32 s31, s30, 40960")
    e("s_mov_b32 s32, s31")
    e("s_add_u32 s40, s31, 40960")
    e(f"s_mov_b32 s37, 0x{C_SCALE:08x}")
    e(f"s_mov_b32 s39, 0x{THR:08x}")
    e("s_lshl_b32 s52, s28, 19")
    e("s_lshl_b32 s33, s30, 13")
    e("s_mov_b32 s34, s33")
    e("s_lshl_b32 s41, s28, 1")
    e("s_add_u32 s41, s41, s29")
    e("s_mul_i32 s41, s41, 24576")
    e("s_add_u32 s42, s41, 8192")
    e("s_add_u32 s43, s41, 16384")
    e("v_lshrrev_b32 v184, 4, v1")
    e("v_and_b32 v185, 15, v1")
    for p in range(4):
        e(f"v_add_u32 v186, {4*p}, v184")
        e(f"v_xor_b32 v186, v186, v185")
        e(f"v_lshlrev_b32 v186, 4, v186")
        e(f"v_lshl_add_u32 v{VOFFK+p}, v184, 8, v186")
    e("v_lshlrev_b32 v186, 2, v184")
    e("v_xor_b32 v186, v186, v185")
    e("v_lshlrev_b32 v186, 4, v186")
    e(f"v_lshl_add_u32 v{VOFFV}, v184, 8, v186")
    e("v_and_b32 v186, 31, v1")
    e("v_lshrrev_b32 v187, 5, v1")
    e("v_xor_b32 v188, v187, v185")
    e("v_lshlrev_b32 v188, 4, v188")
    e(f"v_lshl_add_u32 v{KBASE}, v186, 8, v188")
    e("v_lshrrev_b32 v188, 2, v185")
    e("v_lshl_add_u32 v189, v187, 2, v188")
    e("v_lshlrev_b32 v189, 8, v189")
    e("v_lshl_add_u32 v189, v188, 6, v189")
    e("v_and_b32 v188, 1, v184")
    e("v_lshl_add_u32 v189, v188, 5, v189")
    e("v_and_b32 v188, 3, v1")
    e("v_lshl_add_u32 v189, v188, 3, v189")
    e(f"v_mov_b32 v{VBASE}, v189")
    e("v_lshlrev_b32 v9, 4, v187")
    e("v_lshl_add_u32 v9, v186, 8, v9")
    for t in range(3):
        e(f"v_mov_b32 v{L_+t}, 0")
        e(f"v_mov_b32 v{M_+t}, 0xff800000")
    e("s_mov_b32 s53, 0x7fff0000")
    e("s_mov_b32 s38, 0")
    e("s_waitcnt lgkmcnt(0)")
    for (d, s, n) in ((12, 4, 6291456), (16, 6, 67108864), (20, 8, 67108864), (24, 10, 6291456)):
        e(f"s_mov_b32 s{d}, s{s}")
        e(f"s_and_b32 s{d+1}, s{s+1}, 0xffff")
        e(f"s_mov_b32 s{d+2}, {n}")
        e(f"s_mov_b32 s{d+3}, 0x00020000")
    for x in issue('K'): e(x)
    for x in slot_advance(): e(x)
    for t in range(3):
        so = ["s41", "s42", "s43"][t]
        for kk in range(8):
            q = Q0 + (t*8+kk)*4
            e(f"buffer_load_dwordx4 v[{q}:{q+3}], v9, s[12:15], {so} offen offset:{kk*32}")
    for n in range(1, 5):
        for x in issue('K' if n % 2 == 0 else 'V'): e(x)
        for x in slot_advance(): e(x)
    for r in range(4):
        e(f"v_mov_b32 v{S0+r}, 0")
    for r in range(16):
        e(f"v_mov_b32 v{S0+32+r}, 0xff800000")
    e("s_nop 1")
    for r in range(12):
        e(f"v_mfma_f32_32x32x16_bf16 a[{16*r}:{16*r+15}], v[{S0}:{S0+3}], v[{S0}:{S0+3}], 0")
    e(f"v_mfma_f32_32x32x16_bf16 a[{AV}:{AV+15}], v[{S0}:{S0+3}], v[{S0}:{S0+3}], 0")
    e(f"v_mfma_f32_32x32x16_bf16 a[{AV+16}:{AV+31}], v[{S0}:{S0+3}], v[{S0}:{S0+3}], 0")
    e("s_waitcnt vmcnt(32)")
    for x in kread(): e(x)
    e("s_waitcnt lgkmcnt(0)")
    stamp(1)
    lab("L_LOOP")
    iteration("L")
    if STAMP:
        e("s_add_u32 s46, s38, 2")
        stamp("s46")
    e("s_add_u32 s38, s38, 1")
    e("s_cmp_lt_u32 s38, 16")
    e("s_cbranch_scc1 L_LOOP")
    for x in softmax_b(2): e(x)
    e("s_nop 1")
    for x in pv_mfmas(2): e(x)
    stamp(18)
    for t in range(3):
        e(f"v_mov_b32 v{TMP+t}, v{L_+t}")
    e("s_nop 1")
    for t in range(3):
        e(f"v_permlane32_swap_b32 v{L_+t}, v{TMP+t}")
    e("s_nop 1")
    for t in range(3):
        e(f"v_add_f32 v{L_+t}, v{L_+t}, v{TMP+t}")
    e("v_lshlrev_b32 v184, 2, v1")
    e("v_add_u32 v185, s31, v184")
    for t in range(3):
        e(f"ds_write_b32 v185, v{M_+t} offset:{STATS+t*256}")
        e(f"ds_write_b32 v185, v{L_+t} offset:{STATS+768+t*256}")
    for w in range(4):
        e(f"v_add_u32 v{244+w}, {w*WREG}, v184")
    e("s_waitcnt lgkmcnt(0)")
    e("s_barrier")
    for w in range(4):
        for t in range(3):
            e(f"ds_read_b32 v{200+4*w+t}, v{244+w} offset:{STATS+t*256}")
            e(f"ds_read_b32 v{216+4*w+t}, v{244+w} offset:{STATS+768+t*256}")
    e("s_waitcnt lgkmcnt(0)")
    for t in range(3):
        M = 232 + t; Lr = 236 + t; g = 240 + t
        e(f"v_max_f32 v{M}, v{200+t}, v{204+t}")
        e(f"v_max3_f32 v{M}, v{M}, v{208+t}, v{212+t}")
        for w in range(4):
            e(f"v_sub_f32 v{200+4*w+t}, v{200+4*w+t}, v{M}")
            e(f"v_exp_f32 v{200+4*w+t}, v{200+4*w+t}")
        e("s_nop 0")
        e(f"v_mul_f32 v{Lr}, v{200+t}, v{216+t}")
        for w in range(1, 4):
            e(f"v_fmac_f32 v{Lr}, v{200+4*w+t}, v{216+4*w+t}")
        e(f"v_rcp_f32 v{Lr}, v{Lr}")
        e(f"v_sub_f32 v{g}, v{M_+t}, v{M}")
        e(f"v_exp_f32 v{g}, v{g}")
        e("s_nop 0")
        e(f"v_mul_f32 v{g}, v{g}, v{Lr}")
    e("v_lshlrev_b32 v248, 4, v1")
    for d in range(4):
        e(f"s_cmp_eq_u32 s30, {d}")
        e(f"s_cbranch_scc1 L_SKIPW{d}")
        e(f"s_sub_u32 s54, s30, {d+1}")
        e("s_and_b32 s54, s54, 3")
        e("s_mul_i32 s54, s54, 12288")
        e(f"s_add_u32 s54, s54, {d*WREG}")
        e("v_add_u32 v249, s54, v248")
        for t in range(3):
            for q in range(4):
                a_ = AO + (t*4+d)*16 + q*4
                b_ = 16 + 4*((t*4+q) % 8)
                for r in range(4):
                    e(f"v_accvgpr_read_b32 v{b_+r}, a{a_+r}")
                for r in range(4):
                    e(f"v_mul_f32 v{b_+r}, v{b_+r}, v{240+t}")
                e(f"ds_write_b128 v249, v[{b_}:{b_+3}] offset:{(t*4+q)*1024}")
        lab(f"L_SKIPW{d}")
    for w in range(4):
        lab(f"L_OWN{w}")
        if w < 3:
            e(f"s_cmp_lg_u32 s30, {w}")
            e(f"s_cbranch_scc1 L_OWN{w+1}")
        for t in range(3):
            for q in range(4):
                a_ = AO + (t*4+w)*16 + q*4
                b_ = 48 + (t*4+q)*4
                for r in range(4):
                    e(f"v_accvgpr_read_b32 v{b_+r}, a{a_+r}")
        if w < 3:
            e("s_branch L_OWNDONE")
    lab("L_OWNDONE")
    for t in range(3):
        for k in range(16):
            b_ = 48 + t*16 + k
            e(f"v_mul_f32 v{b_}, v{b_}, v{240+t}")
    e("v_add_u32 v249, s31, v248")
    e("v_and_b32 v247, 31, v1")
    e("v_lshrrev_b32 v246, 5, v1")
    e("v_lshlrev_b32 v247, 8, v247")
    e("v_lshl_add_u32 v247, v246, 3, v247")
    e("s_lshl_b32 s54, s30, 6")
    e("v_add_u32 v247, s54, v247")
    e("s_waitcnt lgkmcnt(0)")
    e("s_barrier")
    for si in range(3):
        for t in range(3):
            for q in range(4):
                b_ = 96 + (si*12 + t*4+q)*4
                e(f"ds_read_b128 v[{b_}:{b_+3}], v249 offset:{si*12288+(t*4+q)*1024}")
    for t in range(3):
        so = ["s41", "s42", "s43"][t]
        for q in range(4):
            k = t*4+q
            e(f"s_waitcnt lgkmcnt({11 - k})")
            o = 48 + k*4
            for si in range(3):
                b_ = 96 + (si*12 + k)*4
                for r in range(4):
                    e(f"v_add_f32 v{o+r}, v{o+r}, v{b_+r}")
            e(f"v_cvt_pk_bf16_f32 v{o}, v{o}, v{o+1}")
            e(f"v_cvt_pk_bf16_f32 v{o+1}, v{o+2}, v{o+3}")
            e(f"buffer_store_dwordx2 v[{o}:{o+1}], v247, s[24:27], {so} offen offset:{q*16}")
    if STAMP:
        lab("L_FIN")
        stamp(19)
        e("s_cmp_lg_u32 s2, " + os.environ.get('STAMPWG', '0'))
        e("s_cbranch_scc1 L_END")
        e("s_cmp_lg_u32 s30, 0")
        e("s_cbranch_scc1 L_END")
        e("s_load_dwordx2 s[48:49], s[0:1], 32")
        e("s_waitcnt lgkmcnt(0)")
        e("s_mov_b32 s50, 256")
        e("s_mov_b32 s51, 0x00020000")
        e("v_lshlrev_b32 v251, 2, v1")
        e("buffer_store_dword v250, v251, s[48:51], 0 offen")
    lab("L_END")
    e("s_endpgm")
    for h in handlers:
        for x in h:
            if x.endswith(":"): out.append(x)
            else: e(x)
    out.append('.section .rodata,"a"')
    out.append(".p2align 6")
    out.append(f".amdhsa_kernel {NAME}_kernel")
    out.append("  .amdhsa_next_free_vgpr 512")
    out.append("  .amdhsa_next_free_sgpr 102")
    out.append("  .amdhsa_accum_offset 256")
    out.append("  .amdhsa_group_segment_fixed_size 0")
    out.append("  .amdhsa_kernarg_size 48")
    out.append("  .amdhsa_user_sgpr_count 2")
    out.append("  .amdhsa_user_sgpr_kernarg_segment_ptr 1")
    out.append("  .amdhsa_system_sgpr_workgroup_id_x 1")
    out.append(".end_amdhsa_kernel")

main()
open(sys.argv[1] if len(sys.argv) > 1 else "standalone__gqa_softmax__near_ridge.s", "w").write("\n".join(out) + "\n")
```

```python
import struct, sys, math, os
NOCOMP = os.environ.get('NOCOMP') == '1'
STAMP = os.environ.get('STAMP') == '1'
CP = os.environ.get('CP', 'nt')
RT = os.environ.get('RT') == '1'

NAME = "standalone__gqa_softmax__near_ridge"
NSLOT = int(os.environ.get('NSLOT', '4'))
SLOTB = 8192
WREG = 40960
QOFF = 32768
STATS = 38912
VMW = 8 * (NSLOT - 1)
NT = 32

def fbits(x): return struct.unpack("<I", struct.pack("<f", x))[0]
C_SCALE = fbits((128 ** -0.5) * math.log2(math.e))
THR = fbits(8.0)

Q0 = 16; S0 = 112; P0 = 160
VOFFK = 2; VOFFV = 6; KBASE = 7; VBASE = 8
M_ = 10; L_ = 13
KADDR = 184; VADDR = 192; TMP = 196
AO = 0; AK = 192; AV = 224
SRC = [96, 144, 96, 144]

out = []
def e(s): out.append("    " + s)
def lab(s): out.append(s + ":")

def interleave(ms, vs, start=0):
    n = len(ms)
    slots = max(1, n - start)
    vi = 0
    for i, m in enumerate(ms):
        e(m)
        if i >= start:
            k = i - start + 1
            tgt = (len(vs) * k + slots - 1) // slots
            while vi < tgt:
                e(vs[vi]); vi += 1
    while vi < len(vs):
        e(vs[vi]); vi += 1

def qk_mfmas(t):
    ms = []
    for kk in range(8):
        c = "0" if kk == 0 else f"v[{S0+16*t}:{S0+16*t+15}]"
        ms.append(f"v_mfma_f32_32x32x16_bf16 v[{S0+16*t}:{S0+16*t+15}], a[{AK+4*kk}:{AK+4*kk+3}], v[{Q0+(t*8+kk)*4}:{Q0+(t*8+kk)*4+3}], {c}")
    return ["s_nop 0"] if NOCOMP else ms

def pv_mfmas(t):
    ms = []
    for ks in range(2):
        for dt in range(4):
            o = AO + (t*4+dt)*16
            f = AV + (dt*2+ks)*4
            p = P0 + t*8 + ks*4
            ms.append(f"v_mfma_f32_32x32x16_bf16 a[{o}:{o+15}], a[{f}:{f+3}], v[{p}:{p+3}], a[{o}:{o+15}]")
    return ["s_nop 0"] if NOCOMP else ms

handlers = []
def softmax_a(t, tag, first):
    s = S0 + 16*t
    mx = TMP + 4*t; t1 = mx + 1; t2 = mx + 2; f = mx + 3
    m = M_ + t; l = L_ + t
    vs = []
    vs.append(f"v_max3_f32 v{mx}, v{s}, v{s+1}, v{s+2}")
    vs.append(f"v_max3_f32 v{t1}, v{s+3}, v{s+4}, v{s+5}")
    vs.append(f"v_max3_f32 v{mx}, v{mx}, v{s+6}, v{s+7}")
    vs.append(f"v_max3_f32 v{t1}, v{t1}, v{s+8}, v{s+9}")
    vs.append(f"v_max3_f32 v{mx}, v{mx}, v{s+10}, v{s+11}")
    vs.append(f"v_max3_f32 v{t1}, v{t1}, v{s+12}, v{s+13}")
    vs.append(f"v_max3_f32 v{mx}, v{mx}, v{s+14}, v{s+15}")
    vs.append(f"v_max_f32 v{mx}, v{mx}, v{t1}")
    vs.append(f"v_mov_b32 v{t1}, v{mx}")
    vs.append(f"s_nop 1")
    vs.append(f"v_permlane32_swap_b32 v{mx}, v{t1}")
    vs.append(f"s_nop 1")
    vs.append(f"v_max_f32 v{mx}, v{mx}, v{t1}")
    vs.append(f"v_mul_f32 v{mx}, s37, v{mx}")
    if first:
        vs.append(f"v_mov_b32 v{m}, v{mx}")
    else:
        vs.append(f"v_sub_f32 v{t1}, v{mx}, v{m}")
        vs.append(f"v_cmp_lt_f32 vcc, s39, v{t1}")
        vs.append(f"s_nop 4")
        vs.append(f"s_cbranch_vccnz RESC_{tag}_{t}")
        vs.append(f"RET_{tag}_{t}:")
        h = [f"RESC_{tag}_{t}:"]
        h.append(f"v_max_f32 v{t1}, v{m}, v{mx}")
        h.append(f"v_sub_f32 v{f}, v{m}, v{t1}")
        h.append(f"v_exp_f32 v{f}, v{f}")
        h.append(f"v_mov_b32 v{m}, v{t1}")
        h.append(f"s_nop 0")
        h.append(f"v_mul_f32 v{l}, v{l}, v{f}")
        h.append(f"s_cmp_eq_u32 s38, 0")
        h.append(f"s_cbranch_scc1 RET_{tag}_{t}")
        for r in range(0, 64, 2):
            a = AO + t*64 + r
            h.append(f"v_accvgpr_read_b32 v{t1}, a{a}")
            h.append(f"v_accvgpr_read_b32 v{t2}, a{a+1}")
            h.append(f"s_nop 0")
            h.append(f"v_mul_f32 v{t1}, v{t1}, v{f}")
            h.append(f"v_mul_f32 v{t2}, v{t2}, v{f}")
            h.append(f"v_accvgpr_write_b32 a{a}, v{t1}")
            h.append(f"v_accvgpr_write_b32 a{a+1}, v{t2}")
        h.append(f"s_nop 1")
        h.append(f"s_branch RET_{tag}_{t}")
        handlers.append(h)
    for r in range(16):
        vs.append(f"v_fma_f32 v{s+r}, v{s+r}, s37, -v{m}")
    return [] if NOCOMP else vs

def softmax_b(t):
    s = S0 + 16*t
    mx = TMP + 4*t; t1 = mx + 1; t2 = mx + 2
    l = L_ + t
    vs = []
    for r in range(16):
        vs.append(f"v_exp_f32 v{s+r}, v{s+r}")
    for r in range(0, 16, 2):
        vs.append(f"v_cvt_pk_bf16_f32 v{P0+t*8+r//2}, v{s+r}, v{s+r+1}")
    vs.append(f"v_add_f32 v{t1}, v{s}, v{s+1}")
    vs.append(f"v_add_f32 v{t2}, v{s+2}, v{s+3}")
    for r in range(4, 16, 2):
        vs.append(f"v_add_f32 v{t1}, v{t1}, v{s+r}")
        vs.append(f"v_add_f32 v{t2}, v{t2}, v{s+r+1}")
    vs.append(f"v_add_f32 v{t1}, v{t1}, v{t2}")
    vs.append(f"v_add_f32 v{l}, v{l}, v{t1}")
    return [] if NOCOMP else vs

def stamp(idx):
    if not STAMP: return
    e("s_memtime s[44:45]")
    e("s_waitcnt lgkmcnt(0)")
    if isinstance(idx, str):
        e(f"s_mov_b32 m0, {idx}")
        e("s_nop 0")
        e("v_writelane_b32 v250, s44, m0")
    else:
        e(f"v_writelane_b32 v250, s44, {idx}")

def slot_advance():
    return ["s_add_u32 s32, s32, 8192",
            "s_cmp_eq_u32 s32, s40",
            "s_cselect_b32 s32, s31, s32"]

def kread():
    vs = [f"v_add_u32 v{KADDR}, s32, v{KBASE}"]
    for kk in range(1, 8):
        vs.append(f"v_xor_b32 v{KADDR+kk}, {kk*32}, v{KADDR}")
    for kk in range(8):
        vs.append(f"ds_read_b128 a[{AK+4*kk}:{AK+4*kk+3}], v{KADDR+kk}")
    return vs

def vread():
    vs = [f"v_add_u32 v{VADDR}, s32, v{VBASE}"]
    for dt in range(1, 4):
        vs.append(f"v_xor_b32 v{VADDR+dt}, {dt*64}, v{VADDR}")
    for ks in range(2):
        for dt in range(4):
            f = AV + (dt*2+ks)*4
            vs.append(f"ds_read_b64_tr_b16 a[{f}:{f+1}], v{VADDR+dt} offset:{ks*4096}")
            vs.append(f"ds_read_b64_tr_b16 a[{f+2}:{f+3}], v{VADDR+dt} offset:{ks*4096+2048}")
    return vs

def issue(kind, lim=None):
    srd = "s[16:19]" if kind == 'K' else "s[20:23]"
    offw = "s33" if kind == 'K' else "s34"
    vs = []
    vs.append(f"s_mov_b32 m0, s32")
    vs.append(f"s_add_u32 s47, {offw}, s52")
    if lim is not None:
        vs.append(f"s_cmp_lt_u32 s38, {lim}")
        vs.append(f"s_cselect_b32 s47, s47, s53")
    vs.append(f"s_add_u32 s35, s47, 4096")
    vs.append(f"s_add_u32 s36, s32, 4096")
    for half in range(2):
        so = "s47" if half == 0 else "s35"
        if half == 1:
            vs.append("s_mov_b32 m0, s36")
            vs.append("s_nop 0")
        for p in range(4):
            vo = VOFFK + p if kind == 'K' else VOFFV
            vs.append(f"buffer_load_dwordx4 v{vo}, {srd}, {so} offen offset:{p*1024} {CP} lds")
    vs.append(f"s_add_u32 {offw}, {offw}, 32768")
    return vs

def wcnt(n):
    return 8 * min(4, NT - 1 - n)

def iteration(tag):
    first = False
    interleave(qk_mfmas(0), softmax_b(2))
    k1 = 'K' if NSLOT % 2 == 0 else 'V'
    k2 = 'V' if NSLOT % 2 == 0 else 'K'
    lim1 = (NT - 1 - NSLOT) // 2 + 1
    lim2 = (NT - 2 - NSLOT) // 2 + 1
    vs = issue(k1, lim1) + slot_advance() + softmax_a(0, tag, first)
    interleave(pv_mfmas(2), vs)
    vs = [f"s_waitcnt vmcnt({VMW})"] + vread() + softmax_b(0) + ["s_waitcnt lgkmcnt(0)"]
    interleave(qk_mfmas(1), vs)
    vs = issue(k2, lim2) + slot_advance() + softmax_a(1, tag, first)
    interleave(pv_mfmas(0), vs)
    interleave(qk_mfmas(2), softmax_b(1))
    vs = [f"s_waitcnt vmcnt({VMW})"] + kread() + softmax_a(2, tag, first) + ["s_waitcnt lgkmcnt(0)"]
    interleave(pv_mfmas(1), vs)

def srcread(ws):
    e(f"s_cmp_eq_u32 s30, {ws}")
    e(f"s_cbranch_scc1 L_SKIPR{ws}")
    e(f"s_add_u32 s54, s30, {3-ws+4}")
    e("s_and_b32 s54, s54, 3")
    e("s_mul_i32 s54, s54, 12288")
    e(f"s_add_u32 s54, s54, {ws*WREG}")
    e("v_add_u32 v249, s54, v248")
    for k in range(12):
        e(f"ds_read_b128 v[{SRC[ws]+4*k}:{SRC[ws]+4*k+3}], v249 offset:{k*1024}")
    lab(f"L_SKIPR{ws}")

def srcacc(ws):
    e(f"s_cmp_eq_u32 s30, {ws}")
    e(f"s_cbranch_scc1 L_SKIPA{ws}")
    for t in range(3):
        for k in range(16):
            e(f"v_fmac_f32 v{48+t*16+k}, v{SRC[ws]+t*16+k}, v{200+4*ws+t}")
    lab(f"L_SKIPA{ws}")

def main():
    hdr = open("standalone__gqa_softmax__near_ridge.s.ref").read().split("\n")
    for line in hdr:
        if line.startswith("; @launch"):
            out.append("; @launch grid=(256,1,1) block=(256,1,1) lds=163840")
        elif line.startswith(";"):
            out.append(line)
        else:
            break
    out.append('.amdgcn_target "amdgcn-amd-amdhsa--gfx950"')
    out.append(".text")
    out.append(f".globl {NAME}_kernel")
    out.append(".p2align 8")
    out.append(f".type {NAME}_kernel,@function")
    lab(f"{NAME}_kernel")
    e("s_cmp_ge_u32 s2, 256")
    e("s_cbranch_scc1 L_END")
    if STAMP: e("v_mov_b32 v250, 0")
    if RT:
        e("s_memrealtime s[66:67]")
    stamp(0)
    e("s_load_dwordx4 s[4:7], s[0:1], 0")
    e("s_load_dwordx4 s[8:11], s[0:1], 16")
    e("s_lshr_b32 s28, s2, 4")
    e("s_lshl_b32 s28, s28, 3")
    e("s_and_b32 s29, s2, 7")
    e("s_add_u32 s28, s28, s29")
    e("s_lshr_b32 s29, s2, 3")
    e("s_and_b32 s29, s29, 1")
    e("v_lshrrev_b32 v1, 6, v0")
    e("s_nop 0")
    e("v_readfirstlane_b32 s30, v1")
    e("v_and_b32 v1, 63, v0")
    e("s_mul_i32 s31, s30, 40960")
    e("s_mov_b32 s32, s31")
    e(f"s_add_u32 s40, s31, {NSLOT*SLOTB}")
    e(f"s_mov_b32 s37, 0x{C_SCALE:08x}")
    e(f"s_mov_b32 s39, 0x{THR:08x}")
    e("s_lshl_b32 s52, s28, 19")
    e("s_lshl_b32 s33, s30, 13")
    e("s_mov_b32 s34, s33")
    e("s_lshl_b32 s41, s28, 1")
    e("s_add_u32 s41, s41, s29")
    e("s_mul_i32 s41, s41, 24576")
    e("s_add_u32 s42, s41, 8192")
    e("s_add_u32 s43, s41, 16384")
    e("v_lshrrev_b32 v184, 4, v1")
    e("v_and_b32 v185, 15, v1")
    for p in range(4):
        e(f"v_add_u32 v186, {4*p}, v184")
        e(f"v_xor_b32 v186, v186, v185")
        e(f"v_lshlrev_b32 v186, 4, v186")
        e(f"v_lshl_add_u32 v{VOFFK+p}, v184, 8, v186")
    e("v_lshlrev_b32 v186, 2, v184")
    e("v_xor_b32 v186, v186, v185")
    e("v_lshlrev_b32 v186, 4, v186")
    e(f"v_lshl_add_u32 v{VOFFV}, v184, 8, v186")
    e("v_and_b32 v186, 31, v1")
    e("v_lshrrev_b32 v187, 5, v1")
    e("v_xor_b32 v188, v187, v185")
    e("v_lshlrev_b32 v188, 4, v188")
    e(f"v_lshl_add_u32 v{KBASE}, v186, 8, v188")
    e("v_lshrrev_b32 v188, 2, v185")
    e("v_lshl_add_u32 v189, v187, 2, v188")
    e("v_lshlrev_b32 v189, 8, v189")
    e("v_lshl_add_u32 v189, v188, 6, v189")
    e("v_and_b32 v188, 1, v184")
    e("v_lshl_add_u32 v189, v188, 5, v189")
    e("v_and_b32 v188, 3, v1")
    e("v_lshl_add_u32 v189, v188, 3, v189")
    e(f"v_mov_b32 v{VBASE}, v189")
    e("v_mov_b32 v204, v186")
    e("v_mov_b32 v205, v187")
    for t in range(3):
        e(f"v_mov_b32 v{L_+t}, 0")
        e(f"v_mov_b32 v{M_+t}, 0xff800000")
    e("s_mov_b32 s53, 0x7fff0000")
    e("s_mov_b32 s38, 0")
    e("s_waitcnt lgkmcnt(0)")
    for (d, s, n) in ((12, 4, 6291456), (16, 6, 67108864), (20, 8, 67108864), (24, 10, 6291456)):
        e(f"s_mov_b32 s{d}, s{s}")
        e(f"s_and_b32 s{d+1}, s{s+1}, 0xffff")
        e(f"s_mov_b32 s{d+2}, {n}")
        e(f"s_mov_b32 s{d+3}, 0x00020000")
    for x in issue('K'): e(x)
    for x in slot_advance(): e(x)
    e("s_mul_i32 s54, s30, 24")
    e(f"s_add_u32 s55, s31, {QOFF}")
    e("s_mul_i32 s56, s30, 6144")
    e("s_add_u32 s56, s56, s41")
    for j in range(6):
        e(f"s_add_u32 s57, s54, {4*j}")
        e("v_add_u32 v186, s57, v184")
        e("v_xor_b32 v186, v186, v185")
        e("v_and_b32 v186, 15, v186")
        e("v_lshlrev_b32 v186, 4, v186")
        e(f"v_lshl_add_u32 v{190+j}, v184, 8, v186")
    for j in range(6):
        if j % 4 == 0:
            e(f"s_add_u32 s57, s55, {j*1024}")
            e("s_mov_b32 m0, s57")
            e(f"s_add_u32 s58, s56, {j*1024}")
        e(f"buffer_load_dwordx4 v{190+j}, s[12:15], s58 offen offset:{(j%4)*1024} lds")
    for n in range(1, NSLOT):
        for x in issue('K' if n % 2 == 0 else 'V'): e(x)
        for x in slot_advance(): e(x)
    for t in range(3):
        e(f"v_add_u32 v196, {32*t}, v204")
        e("v_mul_u32_u24 v197, 43, v196")
        e("v_lshrrev_b32 v197, 10, v197")
        e("v_mul_u32_u24 v198, 24, v197")
        e("v_sub_u32 v198, v196, v198")
        e("v_mul_u32_u24 v197, 40960, v197")
        e("v_lshl_add_u32 v197, v198, 8, v197")
        e("v_and_b32 v198, 15, v196")
        e("v_xor_b32 v198, v198, v205")
        e("v_lshl_add_u32 v197, v198, 4, v197")
        e(f"v_add_u32 v{200+t}, {QOFF}, v197")
    for r in range(4):
        e(f"v_mov_b32 v{S0+r}, 0")
    for r in range(16):
        e(f"v_mov_b32 v{S0+32+r}, 0xff800000")
    e("s_nop 1")
    for r in range(12):
        e(f"v_mfma_f32_32x32x16_bf16 a[{16*r}:{16*r+15}], v[{S0}:{S0+3}], v[{S0}:{S0+3}], 0")
    e(f"v_mfma_f32_32x32x16_bf16 a[{AV}:{AV+15}], v[{S0}:{S0+3}], v[{S0}:{S0+3}], 0")
    e(f"v_mfma_f32_32x32x16_bf16 a[{AV+16}:{AV+31}], v[{S0}:{S0+3}], v[{S0}:{S0+3}], 0")
    e(f"s_waitcnt vmcnt({8*(NSLOT-1)})")
    e("s_barrier")
    for t in range(3):
        for kk in range(8):
            q = Q0 + (t*8+kk)*4
            if kk == 0:
                e(f"ds_read_b128 v[{q}:{q+3}], v{200+t}")
            else:
                e(f"v_xor_b32 v{206+(kk&3)}, {kk*32}, v{200+t}")
                e(f"ds_read_b128 v[{q}:{q+3}], v{206+(kk&3)}")
    for x in kread(): e(x)
    e("s_waitcnt lgkmcnt(0)")
    stamp(1)
    lab("L_LOOP")
    iteration("L")
    if STAMP:
        e("s_add_u32 s46, s38, 2")
        stamp("s46")
    e("s_add_u32 s38, s38, 1")
    e("s_cmp_lt_u32 s38, 16")
    e("s_cbranch_scc1 L_LOOP")
    for x in softmax_b(2): e(x)
    e("s_nop 1")
    for x in pv_mfmas(2): e(x)
    stamp(18)
    for t in range(3):
        e(f"v_mov_b32 v{TMP+t}, v{L_+t}")
    e("s_nop 1")
    for t in range(3):
        e(f"v_permlane32_swap_b32 v{L_+t}, v{TMP+t}")
    e("s_nop 1")
    for t in range(3):
        e(f"v_add_f32 v{L_+t}, v{L_+t}, v{TMP+t}")
    e("v_lshlrev_b32 v184, 2, v1")
    e("v_add_u32 v185, s31, v184")
    e("s_waitcnt vmcnt(0)")
    for t in range(3):
        e(f"ds_write_b32 v185, v{M_+t} offset:{STATS+t*256}")
        e(f"ds_write_b32 v185, v{L_+t} offset:{STATS+768+t*256}")
    for w in range(4):
        e(f"v_add_u32 v{244+w}, {w*WREG}, v184")
    e("v_lshlrev_b32 v248, 4, v1")
    for d in range(4):
        e(f"s_cmp_eq_u32 s30, {d}")
        e(f"s_cbranch_scc1 L_SKIPW{d}")
        e(f"s_sub_u32 s54, {d+3}, s30")
        e("s_and_b32 s54, s54, 3")
        e("s_mul_i32 s54, s54, 12288")
        e("s_add_u32 s54, s54, s31")
        e("v_add_u32 v249, s54, v248")
        for t in range(3):
            for q in range(4):
                a_ = AO + (t*4+d)*16 + q*4
                e(f"ds_write_b128 v249, a[{a_}:{a_+3}] offset:{(t*4+q)*1024}")
        lab(f"L_SKIPW{d}")
    for w in range(4):
        lab(f"L_OWN{w}")
        if w < 3:
            e(f"s_cmp_lg_u32 s30, {w}")
            e(f"s_cbranch_scc1 L_OWN{w+1}")
        for t in range(3):
            for q in range(4):
                a_ = AO + (t*4+w)*16 + q*4
                b_ = 48 + (t*4+q)*4
                for r in range(4):
                    e(f"v_accvgpr_read_b32 v{b_+r}, a{a_+r}")
        if w < 3:
            e("s_branch L_OWNDONE")
    lab("L_OWNDONE")
    e("v_and_b32 v243, 31, v1")
    e("v_lshrrev_b32 v239, 5, v1")
    e("v_lshlrev_b32 v243, 8, v243")
    e("v_lshl_add_u32 v243, v239, 3, v243")
    e("s_lshl_b32 s54, s30, 6")
    e("v_add_u32 v243, s54, v243")
    e("s_waitcnt lgkmcnt(0)")
    stamp(25)
    e("s_barrier")
    stamp(26)
    for w in range(4):
        for t in range(3):
            e(f"ds_read_b32 v{200+4*w+t}, v{244+w} offset:{STATS+t*256}")
            e(f"ds_read_b32 v{216+4*w+t}, v{244+w} offset:{STATS+768+t*256}")
    srcread(0)
    srcread(1)
    e("s_waitcnt lgkmcnt(0)")
    stamp(27)
    for t in range(3):
        M = 232 + t; Lr = 236 + t; g = 240 + t
        e(f"v_max_f32 v{M}, v{200+t}, v{204+t}")
        e(f"v_max3_f32 v{M}, v{M}, v{208+t}, v{212+t}")
        for w in range(4):
            e(f"v_sub_f32 v{200+4*w+t}, v{200+4*w+t}, v{M}")
            e(f"v_exp_f32 v{200+4*w+t}, v{200+4*w+t}")
        e("s_nop 0")
        e(f"v_mul_f32 v{Lr}, v{200+t}, v{216+t}")
        for w in range(1, 4):
            e(f"v_fmac_f32 v{Lr}, v{200+4*w+t}, v{216+4*w+t}")
        e(f"v_rcp_f32 v{Lr}, v{Lr}")
        e(f"v_sub_f32 v{g}, v{M_+t}, v{M}")
        e(f"v_exp_f32 v{g}, v{g}")
        e("s_nop 0")
        e(f"v_mul_f32 v{g}, v{g}, v{Lr}")
        for w in range(4):
            e(f"v_mul_f32 v{200+4*w+t}, v{200+4*w+t}, v{Lr}")
    for t in range(3):
        for k in range(16):
            b_ = 48 + t*16 + k
            e(f"v_mul_f32 v{b_}, v{b_}, v{240+t}")
    srcacc(0)
    srcread(2)
    srcacc(1)
    srcread(3)
    e("s_waitcnt lgkmcnt(0)")
    srcacc(2)
    srcacc(3)
    for t in range(3):
        so = ["s41", "s42", "s43"][t]
        for q in range(4):
            k = t*4+q
            o = 48 + k*4
            e(f"v_cvt_pk_bf16_f32 v{o}, v{o}, v{o+1}")
            e(f"v_cvt_pk_bf16_f32 v{o+1}, v{o+2}, v{o+3}")
            e(f"buffer_store_dwordx2 v[{o}:{o+1}], v243, s[24:27], {so} offen offset:{q*16}")
    if STAMP:
        lab("L_FIN")
        stamp(19)
        if RT:
            e("s_memrealtime s[68:69]")
            e("s_load_dwordx2 s[60:61], s[0:1], 40")
            e("s_waitcnt lgkmcnt(0)")
            e("s_mov_b32 s62, 0x10000")
            e("s_mov_b32 s63, 0x00020000")
            e("s_lshl_b32 s64, s2, 3")
            e("s_add_u32 s64, s64, s30")
            e("s_lshl_b32 s64, s64, 3")
            e("v_mov_b32 v252, s66")
            e("v_mov_b32 v253, s68")
            e("v_mov_b32 v254, s64")
            e("buffer_store_dwordx2 v[252:253], v254, s[60:63], 0 offen")
        e("s_cmp_lg_u32 s2, " + os.environ.get('STAMPWG', '0'))
        e("s_cbranch_scc1 L_END")
        e("s_cmp_lg_u32 s30, 0")
        e("s_cbranch_scc1 L_END")
        e("s_load_dwordx2 s[48:49], s[0:1], 32")
        e("s_waitcnt lgkmcnt(0)")
        e("s_mov_b32 s50, 256")
        e("s_mov_b32 s51, 0x00020000")
        e("v_lshlrev_b32 v251, 2, v1")
        e("buffer_store_dword v250, v251, s[48:51], 0 offen")
    lab("L_END")
    e("s_endpgm")
    for h in handlers:
        for x in h:
            if x.endswith(":"): out.append(x)
            else: e(x)
    out.append('.section .rodata,"a"')
    out.append(".p2align 6")
    out.append(f".amdhsa_kernel {NAME}_kernel")
    out.append("  .amdhsa_next_free_vgpr 512")
    out.append("  .amdhsa_next_free_sgpr 102")
    out.append("  .amdhsa_accum_offset 256")
    out.append("  .amdhsa_group_segment_fixed_size 0")
    out.append("  .amdhsa_kernarg_size 48")
    out.append("  .amdhsa_user_sgpr_count 2")
    out.append("  .amdhsa_user_sgpr_kernarg_segment_ptr 1")
    out.append("  .amdhsa_system_sgpr_workgroup_id_x 1")
    out.append(".end_amdhsa_kernel")

main()
open(sys.argv[1] if len(sys.argv) > 1 else "standalone__gqa_softmax__near_ridge.s", "w").write("\n".join(out) + "\n")
```

```python
import struct, sys, math, os
NOCOMP = os.environ.get('NOCOMP') == '1'
STAMP = os.environ.get('STAMP') == '1'
CP = os.environ.get('CP', 'nt')
RT = os.environ.get('RT') == '1'
SWAP = os.environ.get('SWAP') == '1'

NAME = "standalone__gqa_softmax__near_ridge"
NSLOT = int(os.environ.get('NSLOT', '4'))
SLOTB = 8192
WREG = 40960
QOFF = 32768
STATS = 38912
VMW = 8 * (NSLOT - 1)
NT = 32

def fbits(x): return struct.unpack("<I", struct.pack("<f", x))[0]
C_SCALE = fbits((128 ** -0.5) * math.log2(math.e))
THR = fbits(8.0)

Q0 = 16; S0 = 112; P0 = 160
VOFFK = 2; VOFFV = 6; KBASE = 7; VBASE = 8
M_ = 10; L_ = 13
KADDR = 184; VADDR = 192; TMP = 196
AO = 0; AK = 192; AV = 224
SRC = [96, 144, 96, 144]

out = []
def e(s): out.append("    " + s)
def lab(s): out.append(s + ":")

def interleave(ms, vs, start=0):
    n = len(ms)
    slots = max(1, n - start)
    vi = 0
    for i, m in enumerate(ms):
        e(m)
        if i >= start:
            k = i - start + 1
            tgt = (len(vs) * k + slots - 1) // slots
            while vi < tgt:
                e(vs[vi]); vi += 1
    while vi < len(vs):
        e(vs[vi]); vi += 1

def qk_mfmas(t):
    ms = []
    for kk in range(8):
        c = "0" if kk == 0 else f"v[{S0+16*t}:{S0+16*t+15}]"
        ms.append(f"v_mfma_f32_32x32x16_bf16 v[{S0+16*t}:{S0+16*t+15}], a[{AK+4*kk}:{AK+4*kk+3}], v[{Q0+(t*8+kk)*4}:{Q0+(t*8+kk)*4+3}], {c}")
    return ["s_nop 0"] if NOCOMP else ms

def pv_mfmas(t):
    ms = []
    for ks in range(2):
        for dt in range(4):
            o = AO + (t*4+dt)*16
            f = AV + (dt*2+ks)*4
            p = P0 + t*8 + ks*4
            ms.append(f"v_mfma_f32_32x32x16_bf16 a[{o}:{o+15}], a[{f}:{f+3}], v[{p}:{p+3}], a[{o}:{o+15}]")
    return ["s_nop 0"] if NOCOMP else ms

handlers = []
def softmax_a(t, tag, first):
    s = S0 + 16*t
    mx = TMP + 4*t; t1 = mx + 1; t2 = mx + 2; f = mx + 3
    m = M_ + t; l = L_ + t
    vs = []
    vs.append(f"v_max3_f32 v{mx}, v{s}, v{s+1}, v{s+2}")
    vs.append(f"v_max3_f32 v{t1}, v{s+3}, v{s+4}, v{s+5}")
    vs.append(f"v_max3_f32 v{mx}, v{mx}, v{s+6}, v{s+7}")
    vs.append(f"v_max3_f32 v{t1}, v{t1}, v{s+8}, v{s+9}")
    vs.append(f"v_max3_f32 v{mx}, v{mx}, v{s+10}, v{s+11}")
    vs.append(f"v_max3_f32 v{t1}, v{t1}, v{s+12}, v{s+13}")
    vs.append(f"v_max3_f32 v{mx}, v{mx}, v{s+14}, v{s+15}")
    vs.append(f"v_max_f32 v{mx}, v{mx}, v{t1}")
    vs.append(f"v_mov_b32 v{t1}, v{mx}")
    vs.append(f"s_nop 1")
    vs.append(f"v_permlane32_swap_b32 v{mx}, v{t1}")
    vs.append(f"s_nop 1")
    vs.append(f"v_max_f32 v{mx}, v{mx}, v{t1}")
    vs.append(f"v_mul_f32 v{mx}, s37, v{mx}")
    if first:
        vs.append(f"v_mov_b32 v{m}, v{mx}")
    else:
        vs.append(f"v_sub_f32 v{t1}, v{mx}, v{m}")
        vs.append(f"v_cmp_lt_f32 vcc, s39, v{t1}")
        vs.append(f"s_nop 4")
        vs.append(f"s_cbranch_vccnz RESC_{tag}_{t}")
        vs.append(f"RET_{tag}_{t}:")
        h = [f"RESC_{tag}_{t}:"]
        h.append(f"v_max_f32 v{t1}, v{m}, v{mx}")
        h.append(f"v_sub_f32 v{f}, v{m}, v{t1}")
        h.append(f"v_exp_f32 v{f}, v{f}")
        h.append(f"v_mov_b32 v{m}, v{t1}")
        h.append(f"s_nop 0")
        h.append(f"v_mul_f32 v{l}, v{l}, v{f}")
        h.append(f"s_cmp_eq_u32 s38, 0")
        h.append(f"s_cbranch_scc1 RET_{tag}_{t}")
        for r in range(0, 64, 2):
            a = AO + t*64 + r
            h.append(f"v_accvgpr_read_b32 v{t1}, a{a}")
            h.append(f"v_accvgpr_read_b32 v{t2}, a{a+1}")
            h.append(f"s_nop 0")
            h.append(f"v_mul_f32 v{t1}, v{t1}, v{f}")
            h.append(f"v_mul_f32 v{t2}, v{t2}, v{f}")
            h.append(f"v_accvgpr_write_b32 a{a}, v{t1}")
            h.append(f"v_accvgpr_write_b32 a{a+1}, v{t2}")
        h.append(f"s_nop 1")
        h.append(f"s_branch RET_{tag}_{t}")
        handlers.append(h)
    for r in range(16):
        vs.append(f"v_fma_f32 v{s+r}, v{s+r}, s37, -v{m}")
    return [] if NOCOMP else vs

def softmax_b(t):
    s = S0 + 16*t
    mx = TMP + 4*t; t1 = mx + 1; t2 = mx + 2
    l = L_ + t
    vs = []
    for r in range(16):
        vs.append(f"v_exp_f32 v{s+r}, v{s+r}")
    for r in range(0, 16, 2):
        vs.append(f"v_cvt_pk_bf16_f32 v{P0+t*8+r//2}, v{s+r}, v{s+r+1}")
    vs.append(f"v_add_f32 v{t1}, v{s}, v{s+1}")
    vs.append(f"v_add_f32 v{t2}, v{s+2}, v{s+3}")
    for r in range(4, 16, 2):
        vs.append(f"v_add_f32 v{t1}, v{t1}, v{s+r}")
        vs.append(f"v_add_f32 v{t2}, v{t2}, v{s+r+1}")
    vs.append(f"v_add_f32 v{t1}, v{t1}, v{t2}")
    vs.append(f"v_add_f32 v{l}, v{l}, v{t1}")
    return [] if NOCOMP else vs

def stamp(idx):
    if not STAMP: return
    e("s_memtime s[44:45]")
    e("s_waitcnt lgkmcnt(0)")
    if isinstance(idx, str):
        e(f"s_mov_b32 m0, {idx}")
        e("s_nop 0")
        e("v_writelane_b32 v250, s44, m0")
    else:
        e(f"v_writelane_b32 v250, s44, {idx}")

def slot_advance():
    return ["s_add_u32 s32, s32, 8192",
            "s_cmp_eq_u32 s32, s40",
            "s_cselect_b32 s32, s31, s32"]

def kread(p):
    vs = []
    for kk in range(8):
        vs.append(f"ds_read_b128 a[{AK+4*kk}:{AK+4*kk+3}], v{KADDR+kk} offset:{p*8192}")
    return vs

def vread(p):
    vs = []
    for ks in range(2):
        for dt in range(4):
            f = AV + (dt*2+ks)*4
            vs.append(f"ds_read_b64_tr_b16 a[{f}:{f+1}], v{VADDR+dt} offset:{16384+p*8192+ks*4096}")
            vs.append(f"ds_read_b64_tr_b16 a[{f+2}:{f+3}], v{VADDR+dt} offset:{16384+p*8192+ks*4096+2048}")
    return vs

def issue(kind, p, lim=None):
    srd = "s[16:19]" if kind == 'K' else "s[20:23]"
    offw = "s33" if kind == 'K' else "s34"
    lo = (0 if kind == 'K' else 16384) + p*8192
    vs = []
    vs.append(f"s_add_u32 m0, s31, {lo}")
    if SWAP:
        vs.append(f"s_xor_b32 s47, {offw}, s29")
        vs.append(f"s_lshl_b32 s47, s47, 15")
        vs.append(f"s_add_u32 s47, s47, s52")
    else:
        vs.append(f"s_add_u32 s47, {offw}, s52")
    if lim is not None:
        vs.append(f"s_cmp_lt_u32 s38, {lim}")
        vs.append(f"s_cselect_b32 s47, s47, s53")
    vs.append(f"s_add_u32 s35, s47, 4096")
    for half in range(2):
        so = "s47" if half == 0 else "s35"
        if half == 1:
            vs.append(f"s_add_u32 m0, s31, {lo+4096}")
            vs.append("s_nop 0")
        for q in range(4):
            vo = VOFFK + q if kind == 'K' else VOFFV
            vs.append(f"buffer_load_dwordx4 v{vo}, {srd}, {so} offen offset:{q*1024} {CP} lds")
    vs.append(f"s_add_u32 {offw}, {offw}, {1 if SWAP else 32768}")
    return vs

def iteration(tag, p):
    first = False
    interleave(qk_mfmas(0), softmax_b(2))
    vs = ["s_nop 7", "s_nop 2"] + softmax_a(0, tag, first)
    interleave(pv_mfmas(2), vs)
    vs = ["s_waitcnt vmcnt(16)"] + vread(p) + issue('K', p, 14) + softmax_b(0) + ["s_waitcnt lgkmcnt(0)"]
    interleave(qk_mfmas(1), vs)
    vs = ["s_nop 7", "s_nop 2"] + softmax_a(1, tag, first)
    interleave(pv_mfmas(0), vs)
    interleave(qk_mfmas(2), softmax_b(1))
    for _ in range(int(os.environ.get('SLOW', '0'))):
        e("s_nop 15")
    vs = ["s_waitcnt vmcnt(16)"] + kread(1-p) + issue('V', p, 14) + softmax_a(2, tag, first) + ["s_waitcnt lgkmcnt(0)", "s_add_u32 s38, s38, 1"]
    interleave(pv_mfmas(1), vs)

def srcread(ws):
    e(f"s_cmp_eq_u32 s30, {ws}")
    e(f"s_cbranch_scc1 L_SKIPR{ws}")
    e(f"s_add_u32 s54, s30, {3-ws+4}")
    e("s_and_b32 s54, s54, 3")
    e("s_mul_i32 s54, s54, 12288")
    e(f"s_add_u32 s54, s54, {ws*WREG}")
    e("v_add_u32 v249, s54, v248")
    for k in range(12):
        e(f"ds_read_b128 v[{SRC[ws]+4*k}:{SRC[ws]+4*k+3}], v249 offset:{k*1024}")
    lab(f"L_SKIPR{ws}")

def srcacc(ws):
    e(f"s_cmp_eq_u32 s30, {ws}")
    e(f"s_cbranch_scc1 L_SKIPA{ws}")
    for t in range(3):
        for k in range(16):
            e(f"v_fmac_f32 v{48+t*16+k}, v{SRC[ws]+t*16+k}, v{200+4*ws+t}")
    lab(f"L_SKIPA{ws}")

def main():
    hdr = open("standalone__gqa_softmax__near_ridge.s.ref").read().split("\n")
    for line in hdr:
        if line.startswith("; @launch"):
            out.append("; @launch grid=(256,1,1) block=(256,1,1) lds=163840")
        elif line.startswith(";"):
            out.append(line)
        else:
            break
    out.append('.amdgcn_target "amdgcn-amd-amdhsa--gfx950"')
    out.append(".text")
    out.append(f".globl {NAME}_kernel")
    out.append(".p2align 8")
    out.append(f".type {NAME}_kernel,@function")
    lab(f"{NAME}_kernel")
    e("s_cmp_ge_u32 s2, 256")
    e("s_cbranch_scc1 L_END")
    if STAMP: e("v_mov_b32 v250, 0")
    if RT:
        e("s_memrealtime s[66:67]")
    stamp(0)
    e("s_load_dwordx4 s[4:7], s[0:1], 0")
    e("s_load_dwordx4 s[8:11], s[0:1], 16")
    e("s_lshr_b32 s28, s2, 4")
    e("s_lshl_b32 s28, s28, 3")
    e("s_and_b32 s29, s2, 7")
    e("s_add_u32 s28, s28, s29")
    e("s_lshr_b32 s29, s2, 3")
    e("s_and_b32 s29, s29, 1")
    e("v_lshrrev_b32 v1, 6, v0")
    e("s_nop 0")
    e("v_readfirstlane_b32 s30, v1")
    e("v_and_b32 v1, 63, v0")
    e("s_mul_i32 s31, s30, 40960")
    e("s_mov_b32 s32, s31")
    e(f"s_add_u32 s40, s31, {NSLOT*SLOTB}")
    e(f"s_mov_b32 s37, 0x{C_SCALE:08x}")
    e(f"s_mov_b32 s39, 0x{THR:08x}")
    e("s_lshl_b32 s52, s28, 19")
    e("s_lshl_b32 s33, s30, 13")
    if SWAP:
        e("s_add_u32 s52, s52, s33")
        e("s_mov_b32 s33, 0")
    e("s_mov_b32 s34, s33")
    e("s_lshl_b32 s41, s28, 1")
    e("s_add_u32 s41, s41, s29")
    e("s_mul_i32 s41, s41, 24576")
    e("s_add_u32 s42, s41, 8192")
    e("s_add_u32 s43, s41, 16384")
    e("v_lshrrev_b32 v184, 4, v1")
    e("v_and_b32 v185, 15, v1")
    for p in range(4):
        e(f"v_add_u32 v186, {4*p}, v184")
        e(f"v_xor_b32 v186, v186, v185")
        e(f"v_lshlrev_b32 v186, 4, v186")
        e(f"v_lshl_add_u32 v{VOFFK+p}, v184, 8, v186")
    e("v_lshlrev_b32 v186, 2, v184")
    e("v_xor_b32 v186, v186, v185")
    e("v_lshlrev_b32 v186, 4, v186")
    e(f"v_lshl_add_u32 v{VOFFV}, v184, 8, v186")
    e("v_and_b32 v186, 31, v1")
    e("v_lshrrev_b32 v187, 5, v1")
    e("v_xor_b32 v188, v187, v185")
    e("v_lshlrev_b32 v188, 4, v188")
    e(f"v_lshl_add_u32 v{KBASE}, v186, 8, v188")
    e("v_lshrrev_b32 v188, 2, v185")
    e("v_lshl_add_u32 v189, v187, 2, v188")
    e("v_lshlrev_b32 v189, 8, v189")
    e("v_lshl_add_u32 v189, v188, 6, v189")
    e("v_and_b32 v188, 1, v184")
    e("v_lshl_add_u32 v189, v188, 5, v189")
    e("v_and_b32 v188, 3, v1")
    e("v_lshl_add_u32 v189, v188, 3, v189")
    e(f"v_mov_b32 v{VBASE}, v189")
    e("v_mov_b32 v204, v186")
    e("v_mov_b32 v205, v187")
    for t in range(3):
        e(f"v_mov_b32 v{L_+t}, 0")
        e(f"v_mov_b32 v{M_+t}, 0xff800000")
    e("s_mov_b32 s53, 0x7fff0000")
    e("s_mov_b32 s38, 0")
    e("s_waitcnt lgkmcnt(0)")
    for (d, s, n) in ((12, 4, 6291456), (16, 6, 67108864), (20, 8, 67108864), (24, 10, 6291456)):
        e(f"s_mov_b32 s{d}, s{s}")
        e(f"s_and_b32 s{d+1}, s{s+1}, 0xffff")
        e(f"s_mov_b32 s{d+2}, {n}")
        e(f"s_mov_b32 s{d+3}, 0x00020000")
    for x in issue('K', 0): e(x)
    e("s_mul_i32 s54, s30, 24")
    e(f"s_add_u32 s55, s31, {QOFF}")
    e("s_mul_i32 s56, s30, 6144")
    e("s_add_u32 s56, s56, s41")
    for j in range(6):
        e(f"s_add_u32 s57, s54, {4*j}")
        e("v_add_u32 v186, s57, v184")
        e("v_xor_b32 v186, v186, v185")
        e("v_and_b32 v186, 15, v186")
        e("v_lshlrev_b32 v186, 4, v186")
        e(f"v_lshl_add_u32 v{190+j}, v184, 8, v186")
    for j in range(6):
        if j % 4 == 0:
            e(f"s_add_u32 s57, s55, {j*1024}")
            e("s_mov_b32 m0, s57")
            e(f"s_add_u32 s58, s56, {j*1024}")
        e(f"buffer_load_dwordx4 v{190+j}, s[12:15], s58 offen offset:{(j%4)*1024} lds")
    for x in issue('V', 0): e(x)
    for x in issue('K', 1): e(x)
    for x in issue('V', 1): e(x)
    e(f"v_add_u32 v{KADDR}, s31, v{KBASE}")
    for kk in range(1, 8):
        e(f"v_xor_b32 v{KADDR+kk}, {kk*32}, v{KADDR}")
    e(f"v_add_u32 v{VADDR}, s31, v{VBASE}")
    for dt in range(1, 4):
        e(f"v_xor_b32 v{VADDR+dt}, {dt*64}, v{VADDR}")
    for t in range(3):
        e(f"v_add_u32 v196, {32*t}, v204")
        e("v_mul_u32_u24 v197, 43, v196")
        e("v_lshrrev_b32 v197, 10, v197")
        e("v_mul_u32_u24 v198, 24, v197")
        e("v_sub_u32 v198, v196, v198")
        e("v_mul_u32_u24 v197, 40960, v197")
        e("v_lshl_add_u32 v197, v198, 8, v197")
        e("v_and_b32 v198, 15, v196")
        e("v_xor_b32 v198, v198, v205")
        e("v_lshl_add_u32 v197, v198, 4, v197")
        e(f"v_add_u32 v{200+t}, {QOFF}, v197")
    for r in range(4):
        e(f"v_mov_b32 v{S0+r}, 0")
    for r in range(16):
        e(f"v_mov_b32 v{S0+32+r}, 0xff800000")
    e("s_nop 1")
    for r in range(12):
        e(f"v_mfma_f32_32x32x16_bf16 a[{16*r}:{16*r+15}], v[{S0}:{S0+3}], v[{S0}:{S0+3}], 0")
    e(f"v_mfma_f32_32x32x16_bf16 a[{AV}:{AV+15}], v[{S0}:{S0+3}], v[{S0}:{S0+3}], 0")
    e(f"v_mfma_f32_32x32x16_bf16 a[{AV+16}:{AV+31}], v[{S0}:{S0+3}], v[{S0}:{S0+3}], 0")
    e("s_waitcnt vmcnt(24)")
    e("s_barrier")
    for t in range(3):
        for kk in range(8):
            q = Q0 + (t*8+kk)*4
            if kk == 0:
                e(f"ds_read_b128 v[{q}:{q+3}], v{200+t}")
            else:
                e(f"v_xor_b32 v{206+(kk&3)}, {kk*32}, v{200+t}")
                e(f"ds_read_b128 v[{q}:{q+3}], v{206+(kk&3)}")
    for x in kread(0): e(x)
    e("s_waitcnt lgkmcnt(0)")
    stamp(1)
    lab("L_LOOP")
    iteration("LA", 0)
    if STAMP:
        e("s_add_u32 s46, s38, 1")
        stamp("s46")
    iteration("LB", 1)
    if STAMP:
        e("s_add_u32 s46, s38, 1")
        stamp("s46")
    e("s_cmp_lt_u32 s38, 16")
    e("s_cbranch_scc1 L_LOOP")
    for x in softmax_b(2): e(x)
    e("s_nop 1")
    for x in pv_mfmas(2): e(x)
    stamp(18)
    for t in range(3):
        e(f"v_mov_b32 v{TMP+t}, v{L_+t}")
    e("s_nop 1")
    for t in range(3):
        e(f"v_permlane32_swap_b32 v{L_+t}, v{TMP+t}")
    e("s_nop 1")
    for t in range(3):
        e(f"v_add_f32 v{L_+t}, v{L_+t}, v{TMP+t}")
    e("v_lshlrev_b32 v184, 2, v1")
    e("v_add_u32 v185, s31, v184")
    e("s_waitcnt vmcnt(0)")
    stamp(33)
    for t in range(3):
        e(f"ds_write_b32 v185, v{M_+t} offset:{STATS+t*256}")
        e(f"ds_write_b32 v185, v{L_+t} offset:{STATS+768+t*256}")
    for w in range(4):
        e(f"v_add_u32 v{244+w}, {w*WREG}, v184")
    e("v_lshlrev_b32 v248, 4, v1")
    for d in range(4):
        e(f"s_cmp_eq_u32 s30, {d}")
        e(f"s_cbranch_scc1 L_SKIPW{d}")
        e(f"s_sub_u32 s54, {d+3}, s30")
        e("s_and_b32 s54, s54, 3")
        e("s_mul_i32 s54, s54, 12288")
        e("s_add_u32 s54, s54, s31")
        e("v_add_u32 v249, s54, v248")
        for t in range(3):
            for q in range(4):
                a_ = AO + (t*4+d)*16 + q*4
                e(f"ds_write_b128 v249, a[{a_}:{a_+3}] offset:{(t*4+q)*1024}")
        lab(f"L_SKIPW{d}")
    stamp(34)
    for w in range(4):
        lab(f"L_OWN{w}")
        if w < 3:
            e(f"s_cmp_lg_u32 s30, {w}")
            e(f"s_cbranch_scc1 L_OWN{w+1}")
        for t in range(3):
            for q in range(4):
                a_ = AO + (t*4+w)*16 + q*4
                b_ = 48 + (t*4+q)*4
                for r in range(4):
                    e(f"v_accvgpr_read_b32 v{b_+r}, a{a_+r}")
        if w < 3:
            e("s_branch L_OWNDONE")
    lab("L_OWNDONE")
    e("v_and_b32 v243, 31, v1")
    e("v_lshrrev_b32 v239, 5, v1")
    e("v_lshlrev_b32 v243, 8, v243")
    e("v_lshl_add_u32 v243, v239, 3, v243")
    e("s_lshl_b32 s54, s30, 6")
    e("v_add_u32 v243, s54, v243")
    e("s_waitcnt lgkmcnt(0)")
    stamp(25)
    e("s_barrier")
    stamp(26)
    for w in range(4):
        for t in range(3):
            e(f"ds_read_b32 v{200+4*w+t}, v{244+w} offset:{STATS+t*256}")
            e(f"ds_read_b32 v{216+4*w+t}, v{244+w} offset:{STATS+768+t*256}")
    srcread(0)
    srcread(1)
    e("s_waitcnt lgkmcnt(0)")
    stamp(27)
    for t in range(3):
        M = 232 + t; Lr = 236 + t; g = 240 + t
        e(f"v_max_f32 v{M}, v{200+t}, v{204+t}")
        e(f"v_max3_f32 v{M}, v{M}, v{208+t}, v{212+t}")
        for w in range(4):
            e(f"v_sub_f32 v{200+4*w+t}, v{200+4*w+t}, v{M}")
            e(f"v_exp_f32 v{200+4*w+t}, v{200+4*w+t}")
        e("s_nop 0")
        e(f"v_mul_f32 v{Lr}, v{200+t}, v{216+t}")
        for w in range(1, 4):
            e(f"v_fmac_f32 v{Lr}, v{200+4*w+t}, v{216+4*w+t}")
        e(f"v_rcp_f32 v{Lr}, v{Lr}")
        e(f"v_sub_f32 v{g}, v{M_+t}, v{M}")
        e(f"v_exp_f32 v{g}, v{g}")
        e("s_nop 0")
        e(f"v_mul_f32 v{g}, v{g}, v{Lr}")
        for w in range(4):
            e(f"v_mul_f32 v{200+4*w+t}, v{200+4*w+t}, v{Lr}")
    for t in range(3):
        for k in range(16):
            b_ = 48 + t*16 + k
            e(f"v_mul_f32 v{b_}, v{b_}, v{240+t}")
    stamp(30)
    srcacc(0)
    srcread(2)
    srcacc(1)
    srcread(3)
    e("s_waitcnt lgkmcnt(0)")
    stamp(31)
    srcacc(2)
    srcacc(3)
    stamp(32)
    e("s_add_u32 s55, s41, 4096")
    e("v_and_b32 v243, 31, v1")
    e("v_lshrrev_b32 v239, 5, v1")
    e("v_mul_u32_u24 v243, 272, v243")
    e("v_lshl_add_u32 v243, v239, 3, v243")
    e("s_lshl_b32 s54, s30, 6")
    e("v_add_u32 v243, s54, v243")
    for k in range(12):
        o = 48 + k*4
        e(f"v_cvt_pk_bf16_f32 v{o}, v{o}, v{o+1}")
        e(f"v_cvt_pk_bf16_f32 v{o+1}, v{o+2}, v{o+3}")
    e("s_barrier")
    for t in range(3):
        for q in range(4):
            o = 48 + (t*4+q)*4
            e(f"ds_write_b64 v243, v[{o}:{o+1}] offset:{t*32*272+q*16}")
    e("v_lshrrev_b32 v239, 4, v1")
    e("s_mul_i32 s54, s30, 24")
    e("v_add_u32 v239, s54, v239")
    e("v_and_b32 v242, 15, v1")
    e("v_lshlrev_b32 v242, 4, v242")
    e("v_mul_u32_u24 v241, 272, v239")
    e("v_add_u32 v241, v241, v242")
    e("v_lshl_add_u32 v240, v239, 8, v242")
    e("s_waitcnt lgkmcnt(0)")
    e("s_barrier")
    for j in range(6):
        e(f"ds_read_b128 v[{96+4*j}:{99+4*j}], v241 offset:{j*4*272}")
    for j in range(6):
        e(f"s_waitcnt lgkmcnt({5-j})")
        e(f"buffer_store_dwordx4 v[{96+4*j}:{99+4*j}], v240, s[24:27], s41 offen offset:{(j*1024) if j < 4 else (j-4)*1024}") if j < 4 else e(f"buffer_store_dwordx4 v[{96+4*j}:{99+4*j}], v240, s[24:27], s55 offen offset:{(j-4)*1024}")
    if STAMP:
        lab("L_FIN")
        stamp(19)
        if RT:
            e("s_memrealtime s[68:69]")
            e("s_load_dwordx2 s[60:61], s[0:1], 40")
            e("s_waitcnt lgkmcnt(0)")
            e("s_mov_b32 s62, 0x10000")
            e("s_mov_b32 s63, 0x00020000")
            e("s_lshl_b32 s64, s2, 3")
            e("s_add_u32 s64, s64, s30")
            e("s_lshl_b32 s64, s64, 3")
            e("v_mov_b32 v252, s66")
            e("v_mov_b32 v253, s68")
            e("v_mov_b32 v254, s64")
            e("buffer_store_dwordx2 v[252:253], v254, s[60:63], 0 offen")
        e("s_cmp_lg_u32 s2, " + os.environ.get('STAMPWG', '0'))
        e("s_cbranch_scc1 L_END")
        e("s_cmp_lg_u32 s30, 0")
        e("s_cbranch_scc1 L_END")
        e("s_load_dwordx2 s[48:49], s[0:1], 32")
        e("s_waitcnt lgkmcnt(0)")
        e("s_mov_b32 s50, 256")
        e("s_mov_b32 s51, 0x00020000")
        e("v_lshlrev_b32 v251, 2, v1")
        e("buffer_store_dword v250, v251, s[48:51], 0 offen")
    lab("L_END")
    e("s_endpgm")
    for h in handlers:
        for x in h:
            if x.endswith(":"): out.append(x)
            else: e(x)
    out.append('.section .rodata,"a"')
    out.append(".p2align 6")
    out.append(f".amdhsa_kernel {NAME}_kernel")
    out.append("  .amdhsa_next_free_vgpr 512")
    out.append("  .amdhsa_next_free_sgpr 102")
    out.append("  .amdhsa_accum_offset 256")
    out.append("  .amdhsa_group_segment_fixed_size 0")
    out.append("  .amdhsa_kernarg_size 48")
    out.append("  .amdhsa_user_sgpr_count 2")
    out.append("  .amdhsa_user_sgpr_kernarg_segment_ptr 1")
    out.append("  .amdhsa_system_sgpr_workgroup_id_x 1")
    out.append(".end_amdhsa_kernel")

main()
open(sys.argv[1] if len(sys.argv) > 1 else "standalone__gqa_softmax__near_ridge.s", "w").write("\n".join(out) + "\n")
```

```python
import struct, sys, math, os
NOCOMP = os.environ.get('NOCOMP') == '1'
STAMP = os.environ.get('STAMP') == '1'
CP = os.environ.get('CP', 'nt')
RT = os.environ.get('RT') == '1'
SWAP = os.environ.get('SWAP') == '1'
GEN = os.environ.get('GEN') == '1'
GSTEP = int(os.environ.get('GSTEP', '4'))
GW = int(os.environ.get('GW', '1'))
GROT = int(os.environ.get('GROT', '0'))
NOXCD = os.environ.get('NOXCD') == '1'

NAME = "standalone__gqa_softmax__near_ridge"
NSLOT = int(os.environ.get('NSLOT', '4'))
SLOTB = 8192
WREG = 40960
QOFF = 32768
STATS = 38912
VMW = 8 * (NSLOT - 1)
NT = 32

def fbits(x): return struct.unpack("<I", struct.pack("<f", x))[0]
C_SCALE = fbits((128 ** -0.5) * math.log2(math.e))
THR = fbits(8.0)

Q0 = 16; S0 = 112; P0 = 160
VOFFK = 2; VOFFV = 6; KBASE = 7; VBASE = 8
M_ = 10; L_ = 13
KADDR = 184; VADDR = 192; TMP = 196
AO = 0; AK = 192; AV = 224
SRC = [96, 144, 96, 144]

out = []
def e(s): out.append("    " + s)
def lab(s): out.append(s + ":")

def interleave(ms, vs, start=0):
    n = len(ms)
    slots = max(1, n - start)
    vi = 0
    for i, m in enumerate(ms):
        e(m)
        if i >= start:
            k = i - start + 1
            tgt = (len(vs) * k + slots - 1) // slots
            while vi < tgt:
                e(vs[vi]); vi += 1
    while vi < len(vs):
        e(vs[vi]); vi += 1

def qk_mfmas(t):
    ms = []
    for kk in range(8):
        c = "0" if kk == 0 else f"v[{S0+16*t}:{S0+16*t+15}]"
        ms.append(f"v_mfma_f32_32x32x16_bf16 v[{S0+16*t}:{S0+16*t+15}], a[{AK+4*kk}:{AK+4*kk+3}], v[{Q0+(t*8+kk)*4}:{Q0+(t*8+kk)*4+3}], {c}")
    return ["s_nop 0"] if NOCOMP else ms

def pv_mfmas(t):
    ms = []
    for ks in range(2):
        for dt in range(4):
            o = AO + (t*4+dt)*16
            f = AV + (dt*2+ks)*4
            p = P0 + t*8 + ks*4
            ms.append(f"v_mfma_f32_32x32x16_bf16 a[{o}:{o+15}], a[{f}:{f+3}], v[{p}:{p+3}], a[{o}:{o+15}]")
    return ["s_nop 0"] if NOCOMP else ms

handlers = []
def softmax_a(t, tag, first):
    s = S0 + 16*t
    mx = TMP + 4*t; t1 = mx + 1; t2 = mx + 2; f = mx + 3
    m = M_ + t; l = L_ + t
    vs = []
    vs.append(f"v_max3_f32 v{mx}, v{s}, v{s+1}, v{s+2}")
    vs.append(f"v_max3_f32 v{t1}, v{s+3}, v{s+4}, v{s+5}")
    vs.append(f"v_max3_f32 v{mx}, v{mx}, v{s+6}, v{s+7}")
    vs.append(f"v_max3_f32 v{t1}, v{t1}, v{s+8}, v{s+9}")
    vs.append(f"v_max3_f32 v{mx}, v{mx}, v{s+10}, v{s+11}")
    vs.append(f"v_max3_f32 v{t1}, v{t1}, v{s+12}, v{s+13}")
    vs.append(f"v_max3_f32 v{mx}, v{mx}, v{s+14}, v{s+15}")
    vs.append(f"v_max_f32 v{mx}, v{mx}, v{t1}")
    vs.append(f"v_mov_b32 v{t1}, v{mx}")
    vs.append(f"s_nop 1")
    vs.append(f"v_permlane32_swap_b32 v{mx}, v{t1}")
    vs.append(f"s_nop 1")
    vs.append(f"v_max_f32 v{mx}, v{mx}, v{t1}")
    vs.append(f"v_mul_f32 v{mx}, s37, v{mx}")
    if first:
        vs.append(f"v_mov_b32 v{m}, v{mx}")
    else:
        vs.append(f"v_sub_f32 v{t1}, v{mx}, v{m}")
        vs.append(f"v_cmp_lt_f32 vcc, s39, v{t1}")
        vs.append(f"s_nop 4")
        vs.append(f"s_cbranch_vccnz RESC_{tag}_{t}")
        vs.append(f"RET_{tag}_{t}:")
        h = [f"RESC_{tag}_{t}:"]
        h.append(f"v_max_f32 v{t1}, v{m}, v{mx}")
        h.append(f"v_sub_f32 v{f}, v{m}, v{t1}")
        h.append(f"v_exp_f32 v{f}, v{f}")
        h.append(f"v_mov_b32 v{m}, v{t1}")
        h.append(f"s_nop 0")
        h.append(f"v_mul_f32 v{l}, v{l}, v{f}")
        h.append(f"s_cmp_eq_u32 s38, 0")
        h.append(f"s_cbranch_scc1 RET_{tag}_{t}")
        for r in range(0, 64, 2):
            a = AO + t*64 + r
            h.append(f"v_accvgpr_read_b32 v{t1}, a{a}")
            h.append(f"v_accvgpr_read_b32 v{t2}, a{a+1}")
            h.append(f"s_nop 0")
            h.append(f"v_mul_f32 v{t1}, v{t1}, v{f}")
            h.append(f"v_mul_f32 v{t2}, v{t2}, v{f}")
            h.append(f"v_accvgpr_write_b32 a{a}, v{t1}")
            h.append(f"v_accvgpr_write_b32 a{a+1}, v{t2}")
        h.append(f"s_nop 1")
        h.append(f"s_branch RET_{tag}_{t}")
        handlers.append(h)
    for r in range(16):
        vs.append(f"v_fma_f32 v{s+r}, v{s+r}, s37, -v{m}")
    return [] if NOCOMP else vs

def softmax_b(t):
    s = S0 + 16*t
    mx = TMP + 4*t; t1 = mx + 1; t2 = mx + 2
    l = L_ + t
    vs = []
    for r in range(16):
        vs.append(f"v_exp_f32 v{s+r}, v{s+r}")
    for r in range(0, 16, 2):
        vs.append(f"v_cvt_pk_bf16_f32 v{P0+t*8+r//2}, v{s+r}, v{s+r+1}")
    vs.append(f"v_add_f32 v{t1}, v{s}, v{s+1}")
    vs.append(f"v_add_f32 v{t2}, v{s+2}, v{s+3}")
    for r in range(4, 16, 2):
        vs.append(f"v_add_f32 v{t1}, v{t1}, v{s+r}")
        vs.append(f"v_add_f32 v{t2}, v{t2}, v{s+r+1}")
    vs.append(f"v_add_f32 v{t1}, v{t1}, v{t2}")
    vs.append(f"v_add_f32 v{l}, v{l}, v{t1}")
    return [] if NOCOMP else vs

def stamp(idx):
    if not STAMP: return
    e("s_memtime s[44:45]")
    e("s_waitcnt lgkmcnt(0)")
    if isinstance(idx, str):
        e(f"s_mov_b32 m0, {idx}")
        e("s_nop 0")
        e("v_writelane_b32 v250, s44, m0")
    else:
        e(f"v_writelane_b32 v250, s44, {idx}")

def slot_advance():
    return ["s_add_u32 s32, s32, 8192",
            "s_cmp_eq_u32 s32, s40",
            "s_cselect_b32 s32, s31, s32"]

def kread(p):
    vs = []
    for kk in range(8):
        vs.append(f"ds_read_b128 a[{AK+4*kk}:{AK+4*kk+3}], v{KADDR+kk} offset:{p*8192}")
    return vs

def vread(p):
    vs = []
    for ks in range(2):
        for dt in range(4):
            f = AV + (dt*2+ks)*4
            vs.append(f"ds_read_b64_tr_b16 a[{f}:{f+1}], v{VADDR+dt} offset:{16384+p*8192+ks*4096}")
            vs.append(f"ds_read_b64_tr_b16 a[{f+2}:{f+3}], v{VADDR+dt} offset:{16384+p*8192+ks*4096+2048}")
    return vs

def issue(kind, p, lim=None):
    srd = "s[16:19]" if kind == 'K' else "s[20:23]"
    offw = "s33" if kind == 'K' else "s34"
    lo = (0 if kind == 'K' else 16384) + p*8192
    vs = []
    vs.append(f"s_add_u32 m0, s31, {lo}")
    if GEN:
        vs.append(f"s_and_b32 s47, {offw}, 63")
        vs.append(f"s_lshl_b32 s47, s47, 13")
        vs.append(f"s_add_u32 s47, s47, s52")
    elif SWAP:
        vs.append(f"s_xor_b32 s47, {offw}, s29")
        vs.append(f"s_lshl_b32 s47, s47, 15")
        vs.append(f"s_add_u32 s47, s47, s52")
    else:
        vs.append(f"s_add_u32 s47, {offw}, s52")
    if lim is not None:
        vs.append(f"s_cmp_lt_u32 s38, {lim}")
        vs.append(f"s_cselect_b32 s47, s47, s53")
    vs.append(f"s_add_u32 s35, s47, 4096")
    for half in range(2):
        so = "s47" if half == 0 else "s35"
        if half == 1:
            vs.append(f"s_add_u32 m0, s31, {lo+4096}")
            vs.append("s_nop 0")
        for q in range(4):
            vo = VOFFK + q if kind == 'K' else VOFFV
            vs.append(f"buffer_load_dwordx4 v{vo}, {srd}, {so} offen offset:{q*1024} {CP} lds")
    vs.append(f"s_add_u32 {offw}, {offw}, {GSTEP if GEN else (1 if SWAP else 32768)}")
    return vs

def iteration(tag, p):
    first = False
    interleave(qk_mfmas(0), softmax_b(2))
    vs = ["s_nop 7", "s_nop 2"] + softmax_a(0, tag, first)
    interleave(pv_mfmas(2), vs)
    vs = ["s_waitcnt vmcnt(16)"] + vread(p) + issue('K', p, 14) + softmax_b(0) + ["s_waitcnt lgkmcnt(0)"]
    interleave(qk_mfmas(1), vs)
    vs = ["s_nop 7", "s_nop 2"] + softmax_a(1, tag, first)
    interleave(pv_mfmas(0), vs)
    interleave(qk_mfmas(2), softmax_b(1))
    for _ in range(int(os.environ.get('SLOW', '0'))):
        e("s_nop 15")
    vs = ["s_waitcnt vmcnt(16)"] + kread(1-p) + issue('V', p, 14) + softmax_a(2, tag, first) + ["s_waitcnt lgkmcnt(0)", "s_add_u32 s38, s38, 1"]
    interleave(pv_mfmas(1), vs)

def srcread(ws):
    e(f"s_cmp_eq_u32 s30, {ws}")
    e(f"s_cbranch_scc1 L_SKIPR{ws}")
    e(f"s_add_u32 s54, s30, {3-ws+4}")
    e("s_and_b32 s54, s54, 3")
    e("s_mul_i32 s54, s54, 12288")
    e(f"s_add_u32 s54, s54, {ws*WREG}")
    e("v_add_u32 v249, s54, v248")
    for k in range(12):
        e(f"ds_read_b128 v[{SRC[ws]+4*k}:{SRC[ws]+4*k+3}], v249 offset:{k*1024}")
    lab(f"L_SKIPR{ws}")

def srcacc(ws):
    e(f"s_cmp_eq_u32 s30, {ws}")
    e(f"s_cbranch_scc1 L_SKIPA{ws}")
    for t in range(3):
        for k in range(16):
            e(f"v_fmac_f32 v{48+t*16+k}, v{SRC[ws]+t*16+k}, v{200+4*ws+t}")
    lab(f"L_SKIPA{ws}")

def main():
    hdr = open("standalone__gqa_softmax__near_ridge.s.ref").read().split("\n")
    for line in hdr:
        if line.startswith("; @launch"):
            out.append("; @launch grid=(256,1,1) block=(256,1,1) lds=163840")
        elif line.startswith(";"):
            out.append(line)
        else:
            break
    out.append('.amdgcn_target "amdgcn-amd-amdhsa--gfx950"')
    out.append(".text")
    out.append(f".globl {NAME}_kernel")
    out.append(".p2align 8")
    out.append(f".type {NAME}_kernel,@function")
    lab(f"{NAME}_kernel")
    e("s_cmp_ge_u32 s2, 256")
    e("s_cbranch_scc1 L_END")
    if STAMP: e("v_mov_b32 v250, 0")
    if RT:
        e("s_memrealtime s[66:67]")
    stamp(0)
    e("s_load_dwordx4 s[4:7], s[0:1], 0")
    e("s_load_dwordx4 s[8:11], s[0:1], 16")
    e("s_lshr_b32 s28, s2, 4")
    e("s_lshl_b32 s28, s28, 3")
    e("s_and_b32 s29, s2, 7")
    e("s_add_u32 s28, s28, s29")
    e("s_lshr_b32 s29, s2, 3")
    e("s_and_b32 s29, s29, 1")
    if NOXCD:
        e("s_lshr_b32 s28, s2, 1")
        e("s_and_b32 s29, s2, 1")
    e("v_lshrrev_b32 v1, 6, v0")
    e("s_nop 0")
    e("v_readfirstlane_b32 s30, v1")
    e("v_and_b32 v1, 63, v0")
    e("s_mul_i32 s31, s30, 40960")
    e("s_mov_b32 s32, s31")
    e(f"s_add_u32 s40, s31, {NSLOT*SLOTB}")
    e(f"s_mov_b32 s37, 0x{C_SCALE:08x}")
    e(f"s_mov_b32 s39, 0x{THR:08x}")
    e("s_lshl_b32 s52, s28, 19")
    e("s_lshl_b32 s33, s30, 13")
    if GEN:
        e(f"s_mul_i32 s33, s30, {GW}")
        e(f"s_mul_i32 s34, s28, {GROT}")
        e("s_add_u32 s33, s33, s34")
    if SWAP:
        e("s_add_u32 s52, s52, s33")
        e("s_mov_b32 s33, 0")
    e("s_mov_b32 s34, s33")
    e("s_lshl_b32 s41, s28, 1")
    e("s_add_u32 s41, s41, s29")
    e("s_mul_i32 s41, s41, 24576")
    e("s_add_u32 s42, s41, 8192")
    e("s_add_u32 s43, s41, 16384")
    e("v_lshrrev_b32 v184, 4, v1")
    e("v_and_b32 v185, 15, v1")
    for p in range(4):
        e(f"v_add_u32 v186, {4*p}, v184")
        e(f"v_xor_b32 v186, v186, v185")
        e(f"v_lshlrev_b32 v186, 4, v186")
        e(f"v_lshl_add_u32 v{VOFFK+p}, v184, 8, v186")
    e("v_lshlrev_b32 v186, 2, v184")
    e("v_xor_b32 v186, v186, v185")
    e("v_lshlrev_b32 v186, 4, v186")
    e(f"v_lshl_add_u32 v{VOFFV}, v184, 8, v186")
    e("v_and_b32 v186, 31, v1")
    e("v_lshrrev_b32 v187, 5, v1")
    e("v_xor_b32 v188, v187, v185")
    e("v_lshlrev_b32 v188, 4, v188")
    e(f"v_lshl_add_u32 v{KBASE}, v186, 8, v188")
    e("v_lshrrev_b32 v188, 2, v185")
    e("v_lshl_add_u32 v189, v187, 2, v188")
    e("v_lshlrev_b32 v189, 8, v189")
    e("v_lshl_add_u32 v189, v188, 6, v189")
    e("v_and_b32 v188, 1, v184")
    e("v_lshl_add_u32 v189, v188, 5, v189")
    e("v_and_b32 v188, 3, v1")
    e("v_lshl_add_u32 v189, v188, 3, v189")
    e(f"v_mov_b32 v{VBASE}, v189")
    e("v_mov_b32 v204, v186")
    e("v_mov_b32 v205, v187")
    for t in range(3):
        e(f"v_mov_b32 v{L_+t}, 0")
        e(f"v_mov_b32 v{M_+t}, 0xff800000")
    e("s_mov_b32 s53, 0x7fff0000")
    e("s_mov_b32 s38, 0")
    e("s_waitcnt lgkmcnt(0)")
    for (d, s, n) in ((12, 4, 6291456), (16, 6, 67108864), (20, 8, 67108864), (24, 10, 6291456)):
        e(f"s_mov_b32 s{d}, s{s}")
        e(f"s_and_b32 s{d+1}, s{s+1}, 0xffff")
        e(f"s_mov_b32 s{d+2}, {n}")
        e(f"s_mov_b32 s{d+3}, 0x00020000")
    for x in issue('K', 0): e(x)
    e("s_mul_i32 s54, s30, 24")
    e(f"s_add_u32 s55, s31, {QOFF}")
    e("s_mul_i32 s56, s30, 6144")
    e("s_add_u32 s56, s56, s41")
    for j in range(6):
        e(f"s_add_u32 s57, s54, {4*j}")
        e("v_add_u32 v186, s57, v184")
        e("v_xor_b32 v186, v186, v185")
        e("v_and_b32 v186, 15, v186")
        e("v_lshlrev_b32 v186, 4, v186")
        e(f"v_lshl_add_u32 v{190+j}, v184, 8, v186")
    for j in range(6):
        if j % 4 == 0:
            e(f"s_add_u32 s57, s55, {j*1024}")
            e("s_mov_b32 m0, s57")
            e(f"s_add_u32 s58, s56, {j*1024}")
        e(f"buffer_load_dwordx4 v{190+j}, s[12:15], s58 offen offset:{(j%4)*1024} lds")
    for x in issue('V', 0): e(x)
    for x in issue('K', 1): e(x)
    for x in issue('V', 1): e(x)
    e(f"v_add_u32 v{KADDR}, s31, v{KBASE}")
    for kk in range(1, 8):
        e(f"v_xor_b32 v{KADDR+kk}, {kk*32}, v{KADDR}")
    e(f"v_add_u32 v{VADDR}, s31, v{VBASE}")
    for dt in range(1, 4):
        e(f"v_xor_b32 v{VADDR+dt}, {dt*64}, v{VADDR}")
    for t in range(3):
        e(f"v_add_u32 v196, {32*t}, v204")
        e("v_mul_u32_u24 v197, 43, v196")
        e("v_lshrrev_b32 v197, 10, v197")
        e("v_mul_u32_u24 v198, 24, v197")
        e("v_sub_u32 v198, v196, v198")
        e("v_mul_u32_u24 v197, 40960, v197")
        e("v_lshl_add_u32 v197, v198, 8, v197")
        e("v_and_b32 v198, 15, v196")
        e("v_xor_b32 v198, v198, v205")
        e("v_lshl_add_u32 v197, v198, 4, v197")
        e(f"v_add_u32 v{200+t}, {QOFF}, v197")
    for r in range(4):
        e(f"v_mov_b32 v{S0+r}, 0")
    for r in range(16):
        e(f"v_mov_b32 v{S0+32+r}, 0xff800000")
    e("s_nop 1")
    for r in range(12):
        e(f"v_mfma_f32_32x32x16_bf16 a[{16*r}:{16*r+15}], v[{S0}:{S0+3}], v[{S0}:{S0+3}], 0")
    e(f"v_mfma_f32_32x32x16_bf16 a[{AV}:{AV+15}], v[{S0}:{S0+3}], v[{S0}:{S0+3}], 0")
    e(f"v_mfma_f32_32x32x16_bf16 a[{AV+16}:{AV+31}], v[{S0}:{S0+3}], v[{S0}:{S0+3}], 0")
    e("s_waitcnt vmcnt(24)")
    e("s_barrier")
    for t in range(3):
        for kk in range(8):
            q = Q0 + (t*8+kk)*4
            if kk == 0:
                e(f"ds_read_b128 v[{q}:{q+3}], v{200+t}")
            else:
                e(f"v_xor_b32 v{206+(kk&3)}, {kk*32}, v{200+t}")
                e(f"ds_read_b128 v[{q}:{q+3}], v{206+(kk&3)}")
    for x in kread(0): e(x)
    e("s_waitcnt lgkmcnt(0)")
    stamp(1)
    lab("L_LOOP")
    iteration("LA", 0)
    if STAMP:
        e("s_add_u32 s46, s38, 1")
        stamp("s46")
    iteration("LB", 1)
    if STAMP:
        e("s_add_u32 s46, s38, 1")
        stamp("s46")
    e("s_cmp_lt_u32 s38, 16")
    e("s_cbranch_scc1 L_LOOP")
    for x in softmax_b(2): e(x)
    e("s_nop 1")
    for x in pv_mfmas(2): e(x)
    stamp(18)
    for t in range(3):
        e(f"v_mov_b32 v{TMP+t}, v{L_+t}")
    e("s_nop 1")
    for t in range(3):
        e(f"v_permlane32_swap_b32 v{L_+t}, v{TMP+t}")
    e("s_nop 1")
    for t in range(3):
        e(f"v_add_f32 v{L_+t}, v{L_+t}, v{TMP+t}")
    e("v_lshlrev_b32 v184, 2, v1")
    e("v_add_u32 v185, s31, v184")
    e("s_waitcnt vmcnt(0)")
    stamp(33)
    for t in range(3):
        e(f"ds_write_b32 v185, v{M_+t} offset:{STATS+t*256}")
        e(f"ds_write_b32 v185, v{L_+t} offset:{STATS+768+t*256}")
    for w in range(4):
        e(f"v_add_u32 v{244+w}, {w*WREG}, v184")
    e("v_lshlrev_b32 v248, 4, v1")
    for d in range(4):
        e(f"s_cmp_eq_u32 s30, {d}")
        e(f"s_cbranch_scc1 L_SKIPW{d}")
        e(f"s_sub_u32 s54, {d+3}, s30")
        e("s_and_b32 s54, s54, 3")
        e("s_mul_i32 s54, s54, 12288")
        e("s_add_u32 s54, s54, s31")
        e("v_add_u32 v249, s54, v248")
        for t in range(3):
            for q in range(4):
                a_ = AO + (t*4+d)*16 + q*4
                e(f"ds_write_b128 v249, a[{a_}:{a_+3}] offset:{(t*4+q)*1024}")
        lab(f"L_SKIPW{d}")
    stamp(34)
    for w in range(4):
        lab(f"L_OWN{w}")
        if w < 3:
            e(f"s_cmp_lg_u32 s30, {w}")
            e(f"s_cbranch_scc1 L_OWN{w+1}")
        for t in range(3):
            for q in range(4):
                a_ = AO + (t*4+w)*16 + q*4
                b_ = 48 + (t*4+q)*4
                for r in range(4):
                    e(f"v_accvgpr_read_b32 v{b_+r}, a{a_+r}")
        if w < 3:
            e("s_branch L_OWNDONE")
    lab("L_OWNDONE")
    e("v_and_b32 v243, 31, v1")
    e("v_lshrrev_b32 v239, 5, v1")
    e("v_lshlrev_b32 v243, 8, v243")
    e("v_lshl_add_u32 v243, v239, 3, v243")
    e("s_lshl_b32 s54, s30, 6")
    e("v_add_u32 v243, s54, v243")
    e("s_waitcnt lgkmcnt(0)")
    stamp(25)
    e("s_barrier")
    stamp(26)
    for w in range(4):
        for t in range(3):
            e(f"ds_read_b32 v{200+4*w+t}, v{244+w} offset:{STATS+t*256}")
            e(f"ds_read_b32 v{216+4*w+t}, v{244+w} offset:{STATS+768+t*256}")
    srcread(0)
    srcread(1)
    e("s_waitcnt lgkmcnt(0)")
    stamp(27)
    for t in range(3):
        M = 232 + t; Lr = 236 + t; g = 240 + t
        e(f"v_max_f32 v{M}, v{200+t}, v{204+t}")
        e(f"v_max3_f32 v{M}, v{M}, v{208+t}, v{212+t}")
        for w in range(4):
            e(f"v_sub_f32 v{200+4*w+t}, v{200+4*w+t}, v{M}")
            e(f"v_exp_f32 v{200+4*w+t}, v{200+4*w+t}")
        e("s_nop 0")
        e(f"v_mul_f32 v{Lr}, v{200+t}, v{216+t}")
        for w in range(1, 4):
            e(f"v_fmac_f32 v{Lr}, v{200+4*w+t}, v{216+4*w+t}")
        e(f"v_rcp_f32 v{Lr}, v{Lr}")
        e(f"v_sub_f32 v{g}, v{M_+t}, v{M}")
        e(f"v_exp_f32 v{g}, v{g}")
        e("s_nop 0")
        e(f"v_mul_f32 v{g}, v{g}, v{Lr}")
        for w in range(4):
            e(f"v_mul_f32 v{200+4*w+t}, v{200+4*w+t}, v{Lr}")
    for t in range(3):
        for k in range(16):
            b_ = 48 + t*16 + k
            e(f"v_mul_f32 v{b_}, v{b_}, v{240+t}")
    stamp(30)
    srcacc(0)
    srcread(2)
    srcacc(1)
    srcread(3)
    e("s_waitcnt lgkmcnt(0)")
    stamp(31)
    srcacc(2)
    srcacc(3)
    stamp(32)
    e("s_add_u32 s55, s41, 4096")
    e("v_and_b32 v243, 31, v1")
    e("v_lshrrev_b32 v239, 5, v1")
    e("v_mul_u32_u24 v243, 272, v243")
    e("v_lshl_add_u32 v243, v239, 3, v243")
    e("s_lshl_b32 s54, s30, 6")
    e("v_add_u32 v243, s54, v243")
    for k in range(12):
        o = 48 + k*4
        e(f"v_cvt_pk_bf16_f32 v{o}, v{o}, v{o+1}")
        e(f"v_cvt_pk_bf16_f32 v{o+1}, v{o+2}, v{o+3}")
    e("s_barrier")
    for t in range(3):
        for q in range(4):
            o = 48 + (t*4+q)*4
            e(f"ds_write_b64 v243, v[{o}:{o+1}] offset:{t*32*272+q*16}")
    e("v_lshrrev_b32 v239, 4, v1")
    e("s_mul_i32 s54, s30, 24")
    e("v_add_u32 v239, s54, v239")
    e("v_and_b32 v242, 15, v1")
    e("v_lshlrev_b32 v242, 4, v242")
    e("v_mul_u32_u24 v241, 272, v239")
    e("v_add_u32 v241, v241, v242")
    e("v_lshl_add_u32 v240, v239, 8, v242")
    e("s_waitcnt lgkmcnt(0)")
    e("s_barrier")
    for j in range(6):
        e(f"ds_read_b128 v[{96+4*j}:{99+4*j}], v241 offset:{j*4*272}")
    for j in range(6):
        e(f"s_waitcnt lgkmcnt({5-j})")
        e(f"buffer_store_dwordx4 v[{96+4*j}:{99+4*j}], v240, s[24:27], s41 offen offset:{(j*1024) if j < 4 else (j-4)*1024}") if j < 4 else e(f"buffer_store_dwordx4 v[{96+4*j}:{99+4*j}], v240, s[24:27], s55 offen offset:{(j-4)*1024}")
    if STAMP:
        lab("L_FIN")
        stamp(19)
        if RT:
            e("s_memrealtime s[68:69]")
            e("s_load_dwordx2 s[60:61], s[0:1], 40")
            e("s_waitcnt lgkmcnt(0)")
            e("s_mov_b32 s62, 0x10000")
            e("s_mov_b32 s63, 0x00020000")
            e("s_lshl_b32 s64, s2, 3")
            e("s_add_u32 s64, s64, s30")
            e("s_lshl_b32 s64, s64, 3")
            e("v_mov_b32 v252, s66")
            e("v_mov_b32 v253, s68")
            e("v_mov_b32 v254, s64")
            e("buffer_store_dwordx2 v[252:253], v254, s[60:63], 0 offen")
        e("s_cmp_lg_u32 s2, " + os.environ.get('STAMPWG', '0'))
        e("s_cbranch_scc1 L_END")
        e("s_cmp_lg_u32 s30, 0")
        e("s_cbranch_scc1 L_END")
        e("s_load_dwordx2 s[48:49], s[0:1], 32")
        e("s_waitcnt lgkmcnt(0)")
        e("s_mov_b32 s50, 256")
        e("s_mov_b32 s51, 0x00020000")
        e("v_lshlrev_b32 v251, 2, v1")
        e("buffer_store_dword v250, v251, s[48:51], 0 offen")
    lab("L_END")
    e("s_endpgm")
    for h in handlers:
        for x in h:
            if x.endswith(":"): out.append(x)
            else: e(x)
    out.append('.section .rodata,"a"')
    out.append(".p2align 6")
    out.append(f".amdhsa_kernel {NAME}_kernel")
    out.append("  .amdhsa_next_free_vgpr 512")
    out.append("  .amdhsa_next_free_sgpr 102")
    out.append("  .amdhsa_accum_offset 256")
    out.append("  .amdhsa_group_segment_fixed_size 0")
    out.append("  .amdhsa_kernarg_size 48")
    out.append("  .amdhsa_user_sgpr_count 2")
    out.append("  .amdhsa_user_sgpr_kernarg_segment_ptr 1")
    out.append("  .amdhsa_system_sgpr_workgroup_id_x 1")
    out.append(".end_amdhsa_kernel")

main()
open(sys.argv[1] if len(sys.argv) > 1 else "standalone__gqa_softmax__near_ridge.s", "w").write("\n".join(out) + "\n")
```

```python
import struct, sys, math, os
NOCOMP = os.environ.get('NOCOMP') == '1'
STAMP = os.environ.get('STAMP') == '1'
CP = os.environ.get('CP', 'nt')
RT = os.environ.get('RT') == '1'
SWAP = os.environ.get('SWAP') == '1'
GEN = os.environ.get('GEN') == '1'
GSTEP = int(os.environ.get('GSTEP', '4'))
GW = int(os.environ.get('GW', '1'))
GROT = int(os.environ.get('GROT', '0'))
NOXCD = os.environ.get('NOXCD') == '1'

NAME = "standalone__gqa_softmax__near_ridge"
NSLOT = int(os.environ.get('NSLOT', '4'))
SLOTB = 8192
WREG = 40960
QOFF = 32768
STATS = 38912
VMW = 8 * (NSLOT - 1)
NT = 32

def fbits(x): return struct.unpack("<I", struct.pack("<f", x))[0]
C_SCALE = fbits((128 ** -0.5) * math.log2(math.e))
THR = fbits(8.0)

Q0 = 16; S0 = 112; P0 = 160
VOFFK = 2; VOFFV = 6; KBASE = 7; VBASE = 8
M_ = 10; L_ = 13
KADDR = 184; VADDR = 192; TMP = 196
AO = 0; AK = 192; AV = 224
SRC = [96, 144, 96, 144]

out = []
def e(s): out.append("    " + s)
def lab(s): out.append(s + ":")

def interleave(ms, vs, start=0):
    n = len(ms)
    slots = max(1, n - start)
    vi = 0
    for i, m in enumerate(ms):
        e(m)
        if i >= start:
            k = i - start + 1
            tgt = (len(vs) * k + slots - 1) // slots
            while vi < tgt:
                e(vs[vi]); vi += 1
    while vi < len(vs):
        e(vs[vi]); vi += 1

def qk_mfmas(t):
    ms = []
    for kk in range(8):
        c = "0" if kk == 0 else f"v[{S0+16*t}:{S0+16*t+15}]"
        ms.append(f"v_mfma_f32_32x32x16_bf16 v[{S0+16*t}:{S0+16*t+15}], a[{AK+4*kk}:{AK+4*kk+3}], v[{Q0+(t*8+kk)*4}:{Q0+(t*8+kk)*4+3}], {c}")
    return ["s_nop 0"] if NOCOMP else ms

def pv_mfmas(t):
    ms = []
    for ks in range(2):
        for dt in range(4):
            o = AO + (t*4+dt)*16
            f = AV + (dt*2+ks)*4
            p = P0 + t*8 + ks*4
            ms.append(f"v_mfma_f32_32x32x16_bf16 a[{o}:{o+15}], a[{f}:{f+3}], v[{p}:{p+3}], a[{o}:{o+15}]")
    return ["s_nop 0"] if NOCOMP else ms

handlers = []
def softmax_a(t, tag, first):
    s = S0 + 16*t
    mx = TMP + 4*t; t1 = mx + 1; t2 = mx + 2; f = mx + 3
    m = M_ + t; l = L_ + t
    vs = []
    vs.append(f"v_max3_f32 v{mx}, v{s}, v{s+1}, v{s+2}")
    vs.append(f"v_max3_f32 v{t1}, v{s+3}, v{s+4}, v{s+5}")
    vs.append(f"v_max3_f32 v{mx}, v{mx}, v{s+6}, v{s+7}")
    vs.append(f"v_max3_f32 v{t1}, v{t1}, v{s+8}, v{s+9}")
    vs.append(f"v_max3_f32 v{mx}, v{mx}, v{s+10}, v{s+11}")
    vs.append(f"v_max3_f32 v{t1}, v{t1}, v{s+12}, v{s+13}")
    vs.append(f"v_max3_f32 v{mx}, v{mx}, v{s+14}, v{s+15}")
    vs.append(f"v_max_f32 v{mx}, v{mx}, v{t1}")
    vs.append(f"v_mov_b32 v{t1}, v{mx}")
    vs.append(f"s_nop 1")
    vs.append(f"v_permlane32_swap_b32 v{mx}, v{t1}")
    vs.append(f"s_nop 1")
    vs.append(f"v_max_f32 v{mx}, v{mx}, v{t1}")
    vs.append(f"v_mul_f32 v{mx}, s37, v{mx}")
    if first:
        vs.append(f"v_mov_b32 v{m}, v{mx}")
    else:
        vs.append(f"v_sub_f32 v{t1}, v{mx}, v{m}")
        vs.append(f"v_cmp_lt_f32 vcc, s39, v{t1}")
        vs.append(f"s_nop 4")
        vs.append(f"s_cbranch_vccnz RESC_{tag}_{t}")
        vs.append(f"RET_{tag}_{t}:")
        h = [f"RESC_{tag}_{t}:"]
        h.append(f"v_max_f32 v{t1}, v{m}, v{mx}")
        h.append(f"v_sub_f32 v{f}, v{m}, v{t1}")
        h.append(f"v_exp_f32 v{f}, v{f}")
        h.append(f"v_mov_b32 v{m}, v{t1}")
        h.append(f"s_nop 0")
        h.append(f"v_mul_f32 v{l}, v{l}, v{f}")
        h.append(f"s_cmp_eq_u32 s38, 0")
        h.append(f"s_cbranch_scc1 RET_{tag}_{t}")
        for r in range(0, 64, 2):
            a = AO + t*64 + r
            h.append(f"v_accvgpr_read_b32 v{t1}, a{a}")
            h.append(f"v_accvgpr_read_b32 v{t2}, a{a+1}")
            h.append(f"s_nop 0")
            h.append(f"v_mul_f32 v{t1}, v{t1}, v{f}")
            h.append(f"v_mul_f32 v{t2}, v{t2}, v{f}")
            h.append(f"v_accvgpr_write_b32 a{a}, v{t1}")
            h.append(f"v_accvgpr_write_b32 a{a+1}, v{t2}")
        h.append(f"s_nop 1")
        h.append(f"s_branch RET_{tag}_{t}")
        handlers.append(h)
    for r in range(16):
        vs.append(f"v_fma_f32 v{s+r}, v{s+r}, s37, -v{m}")
    return [] if NOCOMP else vs

def softmax_b(t):
    s = S0 + 16*t
    mx = TMP + 4*t; t1 = mx + 1; t2 = mx + 2
    l = L_ + t
    vs = []
    for r in range(16):
        vs.append(f"v_exp_f32 v{s+r}, v{s+r}")
    for r in range(0, 16, 2):
        vs.append(f"v_cvt_pk_bf16_f32 v{P0+t*8+r//2}, v{s+r}, v{s+r+1}")
    vs.append(f"v_add_f32 v{t1}, v{s}, v{s+1}")
    vs.append(f"v_add_f32 v{t2}, v{s+2}, v{s+3}")
    for r in range(4, 16, 2):
        vs.append(f"v_add_f32 v{t1}, v{t1}, v{s+r}")
        vs.append(f"v_add_f32 v{t2}, v{t2}, v{s+r+1}")
    vs.append(f"v_add_f32 v{t1}, v{t1}, v{t2}")
    vs.append(f"v_add_f32 v{l}, v{l}, v{t1}")
    return [] if NOCOMP else vs

def stamp(idx):
    if not STAMP: return
    e("s_memtime s[44:45]")
    e("s_waitcnt lgkmcnt(0)")
    if isinstance(idx, str):
        e(f"s_mov_b32 m0, {idx}")
        e("s_nop 0")
        e("v_writelane_b32 v250, s44, m0")
    else:
        e(f"v_writelane_b32 v250, s44, {idx}")

def slot_advance():
    return ["s_add_u32 s32, s32, 8192",
            "s_cmp_eq_u32 s32, s40",
            "s_cselect_b32 s32, s31, s32"]

def kread(p):
    vs = []
    for kk in range(8):
        vs.append(f"ds_read_b128 a[{AK+4*kk}:{AK+4*kk+3}], v{KADDR+kk} offset:{p*8192}")
    return vs

def vread(p):
    vs = []
    for ks in range(2):
        for dt in range(4):
            f = AV + (dt*2+ks)*4
            vs.append(f"ds_read_b64_tr_b16 a[{f}:{f+1}], v{VADDR+dt} offset:{16384+p*8192+ks*4096}")
            vs.append(f"ds_read_b64_tr_b16 a[{f+2}:{f+3}], v{VADDR+dt} offset:{16384+p*8192+ks*4096+2048}")
    return vs

def issue(kind, p, lim=None):
    srd = "s[16:19]" if kind == 'K' else "s[20:23]"
    offw = "s33" if kind == 'K' else "s34"
    lo = (0 if kind == 'K' else 16384) + p*8192
    vs = []
    vs.append(f"s_add_u32 m0, s31, {lo}")
    if GEN:
        vs.append(f"s_and_b32 s47, {offw}, 63")
        vs.append(f"s_lshl_b32 s47, s47, 13")
        vs.append(f"s_add_u32 s47, s47, s52")
    elif SWAP:
        vs.append(f"s_xor_b32 s47, {offw}, s29")
        vs.append(f"s_lshl_b32 s47, s47, 15")
        vs.append(f"s_add_u32 s47, s47, s52")
    else:
        vs.append(f"s_add_u32 s47, {offw}, s52")
    if lim is not None:
        vs.append(f"s_cmp_lt_u32 s38, {lim}")
        vs.append(f"s_cselect_b32 s47, s47, s53")
    vs.append(f"s_add_u32 s35, s47, 4096")
    for half in range(2):
        so = "s47" if half == 0 else "s35"
        if half == 1:
            vs.append(f"s_add_u32 m0, s31, {lo+4096}")
            vs.append("s_nop 0")
        for q in range(4):
            vo = VOFFK + q if kind == 'K' else VOFFV
            vs.append(f"buffer_load_dwordx4 v{vo}, {srd}, {so} offen offset:{q*1024} {CP} lds")
    vs.append(f"s_add_u32 {offw}, {offw}, {GSTEP if GEN else (1 if SWAP else 32768)}")
    return vs

def iteration(tag, p):
    first = False
    interleave(qk_mfmas(0), softmax_b(2))
    vs = ["s_nop 7", "s_nop 2"] + softmax_a(0, tag, first)
    interleave(pv_mfmas(2), vs)
    vs = ["s_waitcnt vmcnt(16)"] + vread(p) + issue('K', p, 14) + softmax_b(0) + ["s_waitcnt lgkmcnt(0)"]
    interleave(qk_mfmas(1), vs)
    vs = ["s_nop 7", "s_nop 2"] + softmax_a(1, tag, first)
    interleave(pv_mfmas(0), vs)
    interleave(qk_mfmas(2), softmax_b(1))
    for _ in range(int(os.environ.get('SLOW', '0'))):
        e("s_nop 15")
    vs = ["s_waitcnt vmcnt(16)"] + kread(1-p) + issue('V', p, 14) + softmax_a(2, tag, first) + ["s_waitcnt lgkmcnt(0)", "s_add_u32 s38, s38, 1"]
    interleave(pv_mfmas(1), vs)

def srcread(ws):
    e(f"s_cmp_eq_u32 s30, {ws}")
    e(f"s_cbranch_scc1 L_SKIPR{ws}")
    e(f"s_add_u32 s54, s30, {3-ws+4}")
    e("s_and_b32 s54, s54, 3")
    e("s_mul_i32 s54, s54, 12288")
    e(f"s_add_u32 s54, s54, {ws*WREG}")
    e("v_add_u32 v249, s54, v248")
    for k in range(12):
        e(f"ds_read_b128 v[{SRC[ws]+4*k}:{SRC[ws]+4*k+3}], v249 offset:{k*1024}")
    lab(f"L_SKIPR{ws}")

def srcacc(ws):
    e(f"s_cmp_eq_u32 s30, {ws}")
    e(f"s_cbranch_scc1 L_SKIPA{ws}")
    for t in range(3):
        for k in range(16):
            e(f"v_fmac_f32 v{48+t*16+k}, v{SRC[ws]+t*16+k}, v{200+4*ws+t}")
    lab(f"L_SKIPA{ws}")

def main():
    hdr = open("standalone__gqa_softmax__near_ridge.s.ref").read().split("\n")
    for line in hdr:
        if line.startswith("; @launch"):
            out.append("; @launch grid=(256,1,1) block=(256,1,1) lds=163840")
        elif line.startswith(";"):
            out.append(line)
        else:
            break
    out.append('.amdgcn_target "amdgcn-amd-amdhsa--gfx950"')
    out.append(".text")
    out.append(f".globl {NAME}_kernel")
    out.append(".p2align 8")
    out.append(f".type {NAME}_kernel,@function")
    lab(f"{NAME}_kernel")
    e("s_cmp_ge_u32 s2, 256")
    e("s_cbranch_scc1 L_END")
    if STAMP: e("v_mov_b32 v250, 0")
    if RT:
        e("s_memrealtime s[66:67]")
    stamp(0)
    e("s_load_dwordx4 s[4:7], s[0:1], 0")
    e("s_load_dwordx4 s[8:11], s[0:1], 16")
    e("s_lshr_b32 s28, s2, 4")
    e("s_lshl_b32 s28, s28, 3")
    e("s_and_b32 s29, s2, 7")
    e("s_add_u32 s28, s28, s29")
    e("s_lshr_b32 s29, s2, 3")
    e("s_and_b32 s29, s29, 1")
    if NOXCD:
        e("s_lshr_b32 s28, s2, 1")
        e("s_and_b32 s29, s2, 1")
    e("v_lshrrev_b32 v1, 6, v0")
    e("s_nop 0")
    e("v_readfirstlane_b32 s30, v1")
    e("v_and_b32 v1, 63, v0")
    e("s_mul_i32 s31, s30, 40960")
    e("s_mov_b32 s32, s31")
    e(f"s_add_u32 s40, s31, {NSLOT*SLOTB}")
    e(f"s_mov_b32 s37, 0x{C_SCALE:08x}")
    e(f"s_mov_b32 s39, 0x{THR:08x}")
    e("s_lshl_b32 s52, s28, 19")
    e("s_lshl_b32 s33, s30, 13")
    if GEN:
        e(f"s_mul_i32 s33, s30, {GW}")
        e(f"s_mul_i32 s34, s28, {GROT}")
        e("s_add_u32 s33, s33, s34")
    if SWAP:
        e("s_add_u32 s52, s52, s33")
        e("s_mov_b32 s33, 0")
    e("s_mov_b32 s34, s33")
    e("s_lshl_b32 s41, s28, 1")
    e("s_add_u32 s41, s41, s29")
    e("s_mul_i32 s41, s41, 24576")
    e("s_add_u32 s42, s41, 8192")
    e("s_add_u32 s43, s41, 16384")
    e("v_lshrrev_b32 v184, 4, v1")
    e("v_and_b32 v185, 15, v1")
    for p in range(4):
        e(f"v_add_u32 v186, {4*p}, v184")
        e(f"v_xor_b32 v186, v186, v185")
        e(f"v_lshlrev_b32 v186, 4, v186")
        e(f"v_lshl_add_u32 v{VOFFK+p}, v184, 8, v186")
    e("v_lshlrev_b32 v186, 2, v184")
    e("v_xor_b32 v186, v186, v185")
    e("v_lshlrev_b32 v186, 4, v186")
    e(f"v_lshl_add_u32 v{VOFFV}, v184, 8, v186")
    e("v_and_b32 v186, 31, v1")
    e("v_lshrrev_b32 v187, 5, v1")
    e("v_xor_b32 v188, v187, v185")
    e("v_lshlrev_b32 v188, 4, v188")
    e(f"v_lshl_add_u32 v{KBASE}, v186, 8, v188")
    e("v_lshrrev_b32 v188, 2, v185")
    e("v_lshl_add_u32 v189, v187, 2, v188")
    e("v_lshlrev_b32 v189, 8, v189")
    e("v_lshl_add_u32 v189, v188, 6, v189")
    e("v_and_b32 v188, 1, v184")
    e("v_lshl_add_u32 v189, v188, 5, v189")
    e("v_and_b32 v188, 3, v1")
    e("v_lshl_add_u32 v189, v188, 3, v189")
    e(f"v_mov_b32 v{VBASE}, v189")
    e("v_mov_b32 v204, v186")
    e("v_mov_b32 v205, v187")
    for t in range(3):
        e(f"v_mov_b32 v{L_+t}, 0")
        e(f"v_mov_b32 v{M_+t}, 0xff800000")
    e("s_mov_b32 s53, 0x7fff0000")
    e("s_mov_b32 s38, 0")
    e("s_waitcnt lgkmcnt(0)")
    for (d, s, n) in ((12, 4, 6291456), (16, 6, 67108864), (20, 8, 67108864), (24, 10, 6291456)):
        e(f"s_mov_b32 s{d}, s{s}")
        e(f"s_and_b32 s{d+1}, s{s+1}, 0xffff")
        e(f"s_mov_b32 s{d+2}, {n}")
        e(f"s_mov_b32 s{d+3}, 0x00020000")
    for x in issue('K', 0): e(x)
    e("s_mul_i32 s54, s30, 24")
    e(f"s_add_u32 s55, s31, {QOFF}")
    e("s_mul_i32 s56, s30, 6144")
    e("s_add_u32 s56, s56, s41")
    for j in range(6):
        e(f"s_add_u32 s57, s54, {4*j}")
        e("v_add_u32 v186, s57, v184")
        e("v_xor_b32 v186, v186, v185")
        e("v_and_b32 v186, 15, v186")
        e("v_lshlrev_b32 v186, 4, v186")
        e(f"v_lshl_add_u32 v{190+j}, v184, 8, v186")
    for j in range(6):
        if j % 4 == 0:
            e(f"s_add_u32 s57, s55, {j*1024}")
            e("s_mov_b32 m0, s57")
            e(f"s_add_u32 s58, s56, {j*1024}")
        e(f"buffer_load_dwordx4 v{190+j}, s[12:15], s58 offen offset:{(j%4)*1024} lds")
    for x in issue('V', 0): e(x)
    for x in issue('K', 1): e(x)
    for x in issue('V', 1): e(x)
    e(f"v_add_u32 v{KADDR}, s31, v{KBASE}")
    for kk in range(1, 8):
        e(f"v_xor_b32 v{KADDR+kk}, {kk*32}, v{KADDR}")
    e(f"v_add_u32 v{VADDR}, s31, v{VBASE}")
    for dt in range(1, 4):
        e(f"v_xor_b32 v{VADDR+dt}, {dt*64}, v{VADDR}")
    for t in range(3):
        e(f"v_add_u32 v196, {32*t}, v204")
        e("v_mul_u32_u24 v197, 43, v196")
        e("v_lshrrev_b32 v197, 10, v197")
        e("v_mul_u32_u24 v198, 24, v197")
        e("v_sub_u32 v198, v196, v198")
        e("v_mul_u32_u24 v197, 40960, v197")
        e("v_lshl_add_u32 v197, v198, 8, v197")
        e("v_and_b32 v198, 15, v196")
        e("v_xor_b32 v198, v198, v205")
        e("v_lshl_add_u32 v197, v198, 4, v197")
        e(f"v_add_u32 v{200+t}, {QOFF}, v197")
    for r in range(4):
        e(f"v_mov_b32 v{S0+r}, 0")
    for r in range(16):
        e(f"v_mov_b32 v{S0+32+r}, 0xff800000")
    e("s_nop 1")
    for r in range(12):
        e(f"v_mfma_f32_32x32x16_bf16 a[{16*r}:{16*r+15}], v[{S0}:{S0+3}], v[{S0}:{S0+3}], 0")
    e(f"v_mfma_f32_32x32x16_bf16 a[{AV}:{AV+15}], v[{S0}:{S0+3}], v[{S0}:{S0+3}], 0")
    e(f"v_mfma_f32_32x32x16_bf16 a[{AV+16}:{AV+31}], v[{S0}:{S0+3}], v[{S0}:{S0+3}], 0")
    e("s_waitcnt vmcnt(24)")
    e("s_barrier")
    for t in range(3):
        for kk in range(8):
            q = Q0 + (t*8+kk)*4
            if kk == 0:
                e(f"ds_read_b128 v[{q}:{q+3}], v{200+t}")
            else:
                e(f"v_xor_b32 v{206+(kk&3)}, {kk*32}, v{200+t}")
                e(f"ds_read_b128 v[{q}:{q+3}], v{206+(kk&3)}")
    for x in kread(0): e(x)
    e("s_waitcnt lgkmcnt(0)")
    stamp(1)
    lab("L_LOOP")
    iteration("LA", 0)
    if STAMP:
        e("s_add_u32 s46, s38, 1")
        stamp("s46")
    iteration("LB", 1)
    if STAMP:
        e("s_add_u32 s46, s38, 1")
        stamp("s46")
    e("s_cmp_lt_u32 s38, 16")
    e("s_cbranch_scc1 L_LOOP")
    for x in softmax_b(2): e(x)
    e("s_nop 1")
    for x in pv_mfmas(2): e(x)
    stamp(18)
    for t in range(3):
        e(f"v_mov_b32 v{TMP+t}, v{L_+t}")
    e("s_nop 1")
    for t in range(3):
        e(f"v_permlane32_swap_b32 v{L_+t}, v{TMP+t}")
    e("s_nop 1")
    for t in range(3):
        e(f"v_add_f32 v{L_+t}, v{L_+t}, v{TMP+t}")
    e("v_lshlrev_b32 v184, 2, v1")
    e("v_add_u32 v185, s31, v184")
    e("s_waitcnt vmcnt(0)")
    stamp(33)
    for t in range(3):
        e(f"ds_write_b32 v185, v{M_+t} offset:{STATS+t*256}")
        e(f"ds_write_b32 v185, v{L_+t} offset:{STATS+768+t*256}")
    for w in range(4):
        e(f"v_add_u32 v{244+w}, {w*WREG}, v184")
    e("v_lshlrev_b32 v248, 4, v1")
    for d in range(4):
        e(f"s_cmp_eq_u32 s30, {d}")
        e(f"s_cbranch_scc1 L_SKIPW{d}")
        e(f"s_sub_u32 s54, {d+3}, s30")
        e("s_and_b32 s54, s54, 3")
        e("s_mul_i32 s54, s54, 12288")
        e("s_add_u32 s54, s54, s31")
        e("v_add_u32 v249, s54, v248")
        for t in range(3):
            for q in range(4):
                a_ = AO + (t*4+d)*16 + q*4
                e(f"ds_write_b128 v249, a[{a_}:{a_+3}] offset:{(t*4+q)*1024}")
        lab(f"L_SKIPW{d}")
    stamp(34)
    for w in range(4):
        lab(f"L_OWN{w}")
        if w < 3:
            e(f"s_cmp_lg_u32 s30, {w}")
            e(f"s_cbranch_scc1 L_OWN{w+1}")
        for t in range(3):
            for q in range(4):
                a_ = AO + (t*4+w)*16 + q*4
                b_ = 48 + (t*4+q)*4
                for r in range(4):
                    e(f"v_accvgpr_read_b32 v{b_+r}, a{a_+r}")
        if w < 3:
            e("s_branch L_OWNDONE")
    lab("L_OWNDONE")
    e("v_and_b32 v243, 31, v1")
    e("v_lshrrev_b32 v239, 5, v1")
    e("v_lshlrev_b32 v243, 8, v243")
    e("v_lshl_add_u32 v243, v239, 3, v243")
    e("s_lshl_b32 s54, s30, 6")
    e("v_add_u32 v243, s54, v243")
    e("s_waitcnt lgkmcnt(0)")
    stamp(25)
    e("s_barrier")
    stamp(26)
    for w in range(4):
        for t in range(3):
            e(f"ds_read_b32 v{200+4*w+t}, v{244+w} offset:{STATS+t*256}")
            e(f"ds_read_b32 v{216+4*w+t}, v{244+w} offset:{STATS+768+t*256}")
    srcread(0)
    srcread(1)
    e("s_waitcnt lgkmcnt(0)")
    stamp(27)
    for t in range(3):
        M = 232 + t; Lr = 236 + t; g = 240 + t
        e(f"v_max_f32 v{M}, v{200+t}, v{204+t}")
        e(f"v_max3_f32 v{M}, v{M}, v{208+t}, v{212+t}")
        for w in range(4):
            e(f"v_sub_f32 v{200+4*w+t}, v{200+4*w+t}, v{M}")
            e(f"v_exp_f32 v{200+4*w+t}, v{200+4*w+t}")
        e("s_nop 0")
        e(f"v_mul_f32 v{Lr}, v{200+t}, v{216+t}")
        for w in range(1, 4):
            e(f"v_fmac_f32 v{Lr}, v{200+4*w+t}, v{216+4*w+t}")
        e(f"v_rcp_f32 v{Lr}, v{Lr}")
        e(f"v_sub_f32 v{g}, v{M_+t}, v{M}")
        e(f"v_exp_f32 v{g}, v{g}")
        e("s_nop 0")
        e(f"v_mul_f32 v{g}, v{g}, v{Lr}")
        for w in range(4):
            e(f"v_mul_f32 v{200+4*w+t}, v{200+4*w+t}, v{Lr}")
    for t in range(3):
        for k in range(16):
            b_ = 48 + t*16 + k
            e(f"v_mul_f32 v{b_}, v{b_}, v{240+t}")
    stamp(30)
    srcacc(0)
    srcread(2)
    srcacc(1)
    srcread(3)
    e("s_waitcnt lgkmcnt(0)")
    stamp(31)
    srcacc(2)
    srcacc(3)
    stamp(32)
    e("s_add_u32 s55, s41, 4096")
    e("v_and_b32 v243, 31, v1")
    e("v_lshrrev_b32 v239, 5, v1")
    e("v_mul_u32_u24 v243, 272, v243")
    e("v_lshl_add_u32 v243, v239, 3, v243")
    e("s_lshl_b32 s54, s30, 6")
    e("v_add_u32 v243, s54, v243")
    for k in range(12):
        o = 48 + k*4
        e(f"v_cvt_pk_bf16_f32 v{o}, v{o}, v{o+1}")
        e(f"v_cvt_pk_bf16_f32 v{o+1}, v{o+2}, v{o+3}")
    e("s_barrier")
    for t in range(3):
        for q in range(4):
            o = 48 + (t*4+q)*4
            e(f"ds_write_b64 v243, v[{o}:{o+1}] offset:{t*32*272+q*16}")
    e("v_lshrrev_b32 v239, 4, v1")
    e("s_mul_i32 s54, s30, 24")
    e("v_add_u32 v239, s54, v239")
    e("v_and_b32 v242, 15, v1")
    e("v_lshlrev_b32 v242, 4, v242")
    e("v_mul_u32_u24 v241, 272, v239")
    e("v_add_u32 v241, v241, v242")
    e("v_lshl_add_u32 v240, v239, 8, v242")
    e("s_waitcnt lgkmcnt(0)")
    e("s_barrier")
    for j in range(6):
        e(f"ds_read_b128 v[{96+4*j}:{99+4*j}], v241 offset:{j*4*272}")
    for j in range(6):
        e(f"s_waitcnt lgkmcnt({5-j})")
        e(f"buffer_store_dwordx4 v[{96+4*j}:{99+4*j}], v240, s[24:27], s41 offen offset:{(j*1024) if j < 4 else (j-4)*1024}") if j < 4 else e(f"buffer_store_dwordx4 v[{96+4*j}:{99+4*j}], v240, s[24:27], s55 offen offset:{(j-4)*1024}")
    if STAMP:
        lab("L_FIN")
        stamp(19)
        if RT:
            e("s_memrealtime s[68:69]")
            e("s_load_dwordx2 s[60:61], s[0:1], 40")
            e("s_waitcnt lgkmcnt(0)")
            e("s_mov_b32 s62, 0x10000")
            e("s_mov_b32 s63, 0x00020000")
            e("s_lshl_b32 s64, s2, 3")
            e("s_add_u32 s64, s64, s30")
            e("s_lshl_b32 s64, s64, 3")
            e("v_mov_b32 v252, s66")
            e("v_mov_b32 v253, s68")
            e("v_mov_b32 v254, s64")
            e("buffer_store_dwordx2 v[252:253], v254, s[60:63], 0 offen")
        if os.environ.get('DUR'):
            d0 = int(os.environ['DUR'])
            e(f"s_sub_u32 s60, s2, {d0}")
            e("s_cmp_ge_u32 s60, 16")
            e("s_cbranch_scc1 L_END")
            e("s_cmp_lg_u32 s30, 0")
            e("s_cbranch_scc1 L_END")
            e("s_load_dwordx2 s[48:49], s[0:1], 32")
            e("s_waitcnt lgkmcnt(0)")
            e("s_mov_b32 s50, 256")
            e("s_mov_b32 s51, 0x00020000")
            e("v_readlane_b32 s61, v250, 0")
            e("v_readlane_b32 s62, v250, 19")
            e("s_sub_u32 s62, s62, s61")
            e("s_lshl_b32 s60, s60, 2")
            e("v_mov_b32 v251, s60")
            e("v_mov_b32 v252, s62")
            e("buffer_store_dword v252, v251, s[48:51], 0 offen")
        else:
            e("s_cmp_lg_u32 s2, " + os.environ.get('STAMPWG', '0'))
            e("s_cbranch_scc1 L_END")
            e("s_cmp_lg_u32 s30, 0")
            e("s_cbranch_scc1 L_END")
            e("s_load_dwordx2 s[48:49], s[0:1], 32")
            e("s_waitcnt lgkmcnt(0)")
            e("s_mov_b32 s50, 256")
            e("s_mov_b32 s51, 0x00020000")
            e("v_lshlrev_b32 v251, 2, v1")
            e("buffer_store_dword v250, v251, s[48:51], 0 offen")
    lab("L_END")
    e("s_endpgm")
    for h in handlers:
        for x in h:
            if x.endswith(":"): out.append(x)
            else: e(x)
    out.append('.section .rodata,"a"')
    out.append(".p2align 6")
    out.append(f".amdhsa_kernel {NAME}_kernel")
    out.append("  .amdhsa_next_free_vgpr 512")
    out.append("  .amdhsa_next_free_sgpr 102")
    out.append("  .amdhsa_accum_offset 256")
    out.append("  .amdhsa_group_segment_fixed_size 0")
    out.append("  .amdhsa_kernarg_size 48")
    out.append("  .amdhsa_user_sgpr_count 2")
    out.append("  .amdhsa_user_sgpr_kernarg_segment_ptr 1")
    out.append("  .amdhsa_system_sgpr_workgroup_id_x 1")
    out.append(".end_amdhsa_kernel")

main()
open(sys.argv[1] if len(sys.argv) > 1 else "standalone__gqa_softmax__near_ridge.s", "w").write("\n".join(out) + "\n")
```

```python
import struct, sys, math, os
NOCOMP = os.environ.get('NOCOMP') == '1'
STAMP = os.environ.get('STAMP') == '1'
CP = os.environ.get('CP', 'nt')
RT = os.environ.get('RT') == '1'
SWAP = os.environ.get('SWAP') == '1'
GEN = os.environ.get('GEN') == '1'
GSTEP = int(os.environ.get('GSTEP', '4'))
GW = int(os.environ.get('GW', '1'))
GROT = int(os.environ.get('GROT', '0'))
NOXCD = os.environ.get('NOXCD') == '1'

NAME = "standalone__gqa_softmax__near_ridge"
NSLOT = int(os.environ.get('NSLOT', '4'))
SLOTB = 8192
WREG = 40960
QOFF = 32768
STATS = 38912
VMW = 8 * (NSLOT - 1)
NT = 32

def fbits(x): return struct.unpack("<I", struct.pack("<f", x))[0]
C_SCALE = fbits((128 ** -0.5) * math.log2(math.e))
THR = fbits(8.0)

Q0 = 16; S0 = 112; P0 = 160
VOFFK = 2; VOFFV = 6; KBASE = 7; VBASE = 8
M_ = 10; L_ = 13
KADDR = 184; VADDR = 192; TMP = 196
AO = 0; AK = 192; AV = 224
SRC = [96, 144, 96, 144]

out = []
def e(s): out.append("    " + s)
def lab(s): out.append(s + ":")

def interleave(ms, vs, start=0):
    n = len(ms)
    slots = max(1, n - start)
    vi = 0
    for i, m in enumerate(ms):
        e(m)
        if i >= start:
            k = i - start + 1
            tgt = (len(vs) * k + slots - 1) // slots
            while vi < tgt:
                e(vs[vi]); vi += 1
    while vi < len(vs):
        e(vs[vi]); vi += 1

def qk_mfmas(t):
    ms = []
    for kk in range(8):
        c = "0" if kk == 0 else f"v[{S0+16*t}:{S0+16*t+15}]"
        ms.append(f"v_mfma_f32_32x32x16_bf16 v[{S0+16*t}:{S0+16*t+15}], a[{AK+4*kk}:{AK+4*kk+3}], v[{Q0+(t*8+kk)*4}:{Q0+(t*8+kk)*4+3}], {c}")
    return ["s_nop 0"] if NOCOMP else ms

def pv_mfmas(t):
    ms = []
    for ks in range(2):
        for dt in range(4):
            o = AO + (t*4+dt)*16
            f = AV + (dt*2+ks)*4
            p = P0 + t*8 + ks*4
            ms.append(f"v_mfma_f32_32x32x16_bf16 a[{o}:{o+15}], a[{f}:{f+3}], v[{p}:{p+3}], a[{o}:{o+15}]")
    return ["s_nop 0"] if NOCOMP else ms

handlers = []
def softmax_a(t, tag, first):
    s = S0 + 16*t
    mx = TMP + 4*t; t1 = mx + 1; t2 = mx + 2; f = mx + 3
    m = M_ + t; l = L_ + t
    vs = []
    vs.append(f"v_max3_f32 v{mx}, v{s}, v{s+1}, v{s+2}")
    vs.append(f"v_max3_f32 v{t1}, v{s+3}, v{s+4}, v{s+5}")
    vs.append(f"v_max3_f32 v{mx}, v{mx}, v{s+6}, v{s+7}")
    vs.append(f"v_max3_f32 v{t1}, v{t1}, v{s+8}, v{s+9}")
    vs.append(f"v_max3_f32 v{mx}, v{mx}, v{s+10}, v{s+11}")
    vs.append(f"v_max3_f32 v{t1}, v{t1}, v{s+12}, v{s+13}")
    vs.append(f"v_max3_f32 v{mx}, v{mx}, v{s+14}, v{s+15}")
    vs.append(f"v_max_f32 v{mx}, v{mx}, v{t1}")
    vs.append(f"v_mov_b32 v{t1}, v{mx}")
    vs.append(f"s_nop 1")
    vs.append(f"v_permlane32_swap_b32 v{mx}, v{t1}")
    vs.append(f"s_nop 1")
    vs.append(f"v_max_f32 v{mx}, v{mx}, v{t1}")
    vs.append(f"v_mul_f32 v{mx}, s37, v{mx}")
    if first:
        vs.append(f"v_mov_b32 v{m}, v{mx}")
    else:
        vs.append(f"v_sub_f32 v{t1}, v{mx}, v{m}")
        vs.append(f"v_cmp_lt_f32 vcc, s39, v{t1}")
        vs.append(f"s_nop 4")
        vs.append(f"s_cbranch_vccnz RESC_{tag}_{t}")
        vs.append(f"RET_{tag}_{t}:")
        h = [f"RESC_{tag}_{t}:"]
        h.append(f"v_max_f32 v{t1}, v{m}, v{mx}")
        h.append(f"v_sub_f32 v{f}, v{m}, v{t1}")
        h.append(f"v_exp_f32 v{f}, v{f}")
        h.append(f"v_mov_b32 v{m}, v{t1}")
        h.append(f"s_nop 0")
        h.append(f"v_mul_f32 v{l}, v{l}, v{f}")
        h.append(f"s_cmp_eq_u32 s38, 0")
        h.append(f"s_cbranch_scc1 RET_{tag}_{t}")
        for r in range(0, 64, 2):
            a = AO + t*64 + r
            h.append(f"v_accvgpr_read_b32 v{t1}, a{a}")
            h.append(f"v_accvgpr_read_b32 v{t2}, a{a+1}")
            h.append(f"s_nop 0")
            h.append(f"v_mul_f32 v{t1}, v{t1}, v{f}")
            h.append(f"v_mul_f32 v{t2}, v{t2}, v{f}")
            h.append(f"v_accvgpr_write_b32 a{a}, v{t1}")
            h.append(f"v_accvgpr_write_b32 a{a+1}, v{t2}")
        h.append(f"s_nop 1")
        h.append(f"s_branch RET_{tag}_{t}")
        handlers.append(h)
    for r in range(16):
        vs.append(f"v_fma_f32 v{s+r}, v{s+r}, s37, -v{m}")
    return [] if NOCOMP else vs

def softmax_b(t):
    s = S0 + 16*t
    mx = TMP + 4*t; t1 = mx + 1; t2 = mx + 2
    l = L_ + t
    vs = []
    for r in range(16):
        vs.append(f"v_exp_f32 v{s+r}, v{s+r}")
    for r in range(0, 16, 2):
        vs.append(f"v_cvt_pk_bf16_f32 v{P0+t*8+r//2}, v{s+r}, v{s+r+1}")
    vs.append(f"v_add_f32 v{t1}, v{s}, v{s+1}")
    vs.append(f"v_add_f32 v{t2}, v{s+2}, v{s+3}")
    for r in range(4, 16, 2):
        vs.append(f"v_add_f32 v{t1}, v{t1}, v{s+r}")
        vs.append(f"v_add_f32 v{t2}, v{t2}, v{s+r+1}")
    vs.append(f"v_add_f32 v{t1}, v{t1}, v{t2}")
    vs.append(f"v_add_f32 v{l}, v{l}, v{t1}")
    return [] if NOCOMP else vs

def stamp(idx):
    if not STAMP: return
    e("s_memtime s[44:45]")
    e("s_waitcnt lgkmcnt(0)")
    if isinstance(idx, str):
        e(f"s_mov_b32 m0, {idx}")
        e("s_nop 0")
        e("v_writelane_b32 v250, s44, m0")
    else:
        e(f"v_writelane_b32 v250, s44, {idx}")

def slot_advance():
    return ["s_add_u32 s32, s32, 8192",
            "s_cmp_eq_u32 s32, s40",
            "s_cselect_b32 s32, s31, s32"]

def kread(p):
    vs = []
    for kk in range(8):
        vs.append(f"ds_read_b128 a[{AK+4*kk}:{AK+4*kk+3}], v{KADDR+kk} offset:{p*8192}")
    return vs

def vread(p):
    vs = []
    for ks in range(2):
        for dt in range(4):
            f = AV + (dt*2+ks)*4
            vs.append(f"ds_read_b64_tr_b16 a[{f}:{f+1}], v{VADDR+dt} offset:{16384+p*8192+ks*4096}")
            vs.append(f"ds_read_b64_tr_b16 a[{f+2}:{f+3}], v{VADDR+dt} offset:{16384+p*8192+ks*4096+2048}")
    return vs

def issue(kind, p, lim=None):
    srd = "s[16:19]" if kind == 'K' else "s[20:23]"
    offw = "s33" if kind == 'K' else "s34"
    lo = (0 if kind == 'K' else 16384) + p*8192
    vs = []
    vs.append(f"s_add_u32 m0, s31, {lo}")
    if GEN:
        vs.append(f"s_and_b32 s47, {offw}, 63")
        vs.append(f"s_lshl_b32 s47, s47, 13")
        vs.append(f"s_add_u32 s47, s47, s52")
    elif SWAP:
        vs.append(f"s_xor_b32 s47, {offw}, s29")
        vs.append(f"s_lshl_b32 s47, s47, 15")
        vs.append(f"s_add_u32 s47, s47, s52")
    else:
        vs.append(f"s_add_u32 s47, {offw}, s52")
    if lim is not None:
        vs.append(f"s_cmp_lt_u32 s38, {lim}")
        vs.append(f"s_cselect_b32 s47, s47, s53")
    vs.append(f"s_add_u32 s35, s47, 4096")
    for half in range(2):
        so = "s47" if half == 0 else "s35"
        if half == 1:
            vs.append(f"s_add_u32 m0, s31, {lo+4096}")
            vs.append("s_nop 0")
        for q in range(4):
            vo = VOFFK + q if kind == 'K' else VOFFV
            vs.append(f"buffer_load_dwordx4 v{vo}, {srd}, {so} offen offset:{q*1024} {CP} lds")
    vs.append(f"s_add_u32 {offw}, {offw}, {GSTEP if GEN else (1 if SWAP else 32768)}")
    return vs

def iteration(tag, p):
    first = False
    LATE = os.environ.get('LATE') == '1'
    interleave(qk_mfmas(0), softmax_b(2))
    if LATE:
        vs = issue('V', 1-p, 15) + softmax_a(0, tag, first)
    else:
        vs = ["s_nop 7", "s_nop 2"] + softmax_a(0, tag, first)
    interleave(pv_mfmas(2), vs)
    if LATE:
        vs = ["s_waitcnt vmcnt(16)"] + vread(p) + softmax_b(0) + ["s_waitcnt lgkmcnt(0)"]
    else:
        vs = ["s_waitcnt vmcnt(16)"] + vread(p) + issue('K', p, 14) + softmax_b(0) + ["s_waitcnt lgkmcnt(0)"]
    interleave(qk_mfmas(1), vs)
    vs = ["s_nop 7", "s_nop 2"] + softmax_a(1, tag, first)
    interleave(pv_mfmas(0), vs)
    if LATE:
        interleave(qk_mfmas(2), issue('K', p, 14) + softmax_b(1))
        vs = ["s_waitcnt vmcnt(16)"] + kread(1-p) + softmax_a(2, tag, first) + ["s_waitcnt lgkmcnt(0)", "s_add_u32 s38, s38, 1"]
    else:
        interleave(qk_mfmas(2), softmax_b(1))
        vs = ["s_waitcnt vmcnt(16)"] + kread(1-p) + issue('V', p, 14) + softmax_a(2, tag, first) + ["s_waitcnt lgkmcnt(0)", "s_add_u32 s38, s38, 1"]
    interleave(pv_mfmas(1), vs)

def srcread(ws):
    e(f"s_cmp_eq_u32 s30, {ws}")
    e(f"s_cbranch_scc1 L_SKIPR{ws}")
    e(f"s_add_u32 s54, s30, {3-ws+4}")
    e("s_and_b32 s54, s54, 3")
    e("s_mul_i32 s54, s54, 12288")
    e(f"s_add_u32 s54, s54, {ws*WREG}")
    e("v_add_u32 v249, s54, v248")
    for k in range(12):
        e(f"ds_read_b128 v[{SRC[ws]+4*k}:{SRC[ws]+4*k+3}], v249 offset:{k*1024}")
    lab(f"L_SKIPR{ws}")

def srcacc(ws):
    e(f"s_cmp_eq_u32 s30, {ws}")
    e(f"s_cbranch_scc1 L_SKIPA{ws}")
    for t in range(3):
        for k in range(16):
            e(f"v_fmac_f32 v{48+t*16+k}, v{SRC[ws]+t*16+k}, v{200+4*ws+t}")
    lab(f"L_SKIPA{ws}")

def main():
    hdr = open("standalone__gqa_softmax__near_ridge.s.ref").read().split("\n")
    for line in hdr:
        if line.startswith("; @launch"):
            out.append("; @launch grid=(256,1,1) block=(256,1,1) lds=163840")
        elif line.startswith(";"):
            out.append(line)
        else:
            break
    out.append('.amdgcn_target "amdgcn-amd-amdhsa--gfx950"')
    out.append(".text")
    out.append(f".globl {NAME}_kernel")
    out.append(".p2align 8")
    out.append(f".type {NAME}_kernel,@function")
    lab(f"{NAME}_kernel")
    e("s_cmp_ge_u32 s2, 256")
    e("s_cbranch_scc1 L_END")
    if STAMP: e("v_mov_b32 v250, 0")
    if RT:
        e("s_memrealtime s[66:67]")
    stamp(0)
    e("s_load_dwordx4 s[4:7], s[0:1], 0")
    e("s_load_dwordx4 s[8:11], s[0:1], 16")
    e("s_lshr_b32 s28, s2, 4")
    e("s_lshl_b32 s28, s28, 3")
    e("s_and_b32 s29, s2, 7")
    e("s_add_u32 s28, s28, s29")
    e("s_lshr_b32 s29, s2, 3")
    e("s_and_b32 s29, s29, 1")
    if NOXCD:
        e("s_lshr_b32 s28, s2, 1")
        e("s_and_b32 s29, s2, 1")
    e("v_lshrrev_b32 v1, 6, v0")
    e("s_nop 0")
    e("v_readfirstlane_b32 s30, v1")
    e("v_and_b32 v1, 63, v0")
    e("s_mul_i32 s31, s30, 40960")
    e("s_mov_b32 s32, s31")
    e(f"s_add_u32 s40, s31, {NSLOT*SLOTB}")
    e(f"s_mov_b32 s37, 0x{C_SCALE:08x}")
    e(f"s_mov_b32 s39, 0x{THR:08x}")
    e("s_lshl_b32 s52, s28, 19")
    e("s_lshl_b32 s33, s30, 13")
    if GEN:
        e(f"s_mul_i32 s33, s30, {GW}")
        e(f"s_mul_i32 s34, s28, {GROT}")
        e("s_add_u32 s33, s33, s34")
    if SWAP:
        e("s_add_u32 s52, s52, s33")
        e("s_mov_b32 s33, 0")
    e("s_mov_b32 s34, s33")
    e("s_lshl_b32 s41, s28, 1")
    e("s_add_u32 s41, s41, s29")
    e("s_mul_i32 s41, s41, 24576")
    e("s_add_u32 s42, s41, 8192")
    e("s_add_u32 s43, s41, 16384")
    e("v_lshrrev_b32 v184, 4, v1")
    e("v_and_b32 v185, 15, v1")
    for p in range(4):
        e(f"v_add_u32 v186, {4*p}, v184")
        e(f"v_xor_b32 v186, v186, v185")
        e(f"v_lshlrev_b32 v186, 4, v186")
        e(f"v_lshl_add_u32 v{VOFFK+p}, v184, 8, v186")
    e("v_lshlrev_b32 v186, 2, v184")
    e("v_xor_b32 v186, v186, v185")
    e("v_lshlrev_b32 v186, 4, v186")
    e(f"v_lshl_add_u32 v{VOFFV}, v184, 8, v186")
    e("v_and_b32 v186, 31, v1")
    e("v_lshrrev_b32 v187, 5, v1")
    e("v_xor_b32 v188, v187, v185")
    e("v_lshlrev_b32 v188, 4, v188")
    e(f"v_lshl_add_u32 v{KBASE}, v186, 8, v188")
    e("v_lshrrev_b32 v188, 2, v185")
    e("v_lshl_add_u32 v189, v187, 2, v188")
    e("v_lshlrev_b32 v189, 8, v189")
    e("v_lshl_add_u32 v189, v188, 6, v189")
    e("v_and_b32 v188, 1, v184")
    e("v_lshl_add_u32 v189, v188, 5, v189")
    e("v_and_b32 v188, 3, v1")
    e("v_lshl_add_u32 v189, v188, 3, v189")
    e(f"v_mov_b32 v{VBASE}, v189")
    e("v_mov_b32 v204, v186")
    e("v_mov_b32 v205, v187")
    for t in range(3):
        e(f"v_mov_b32 v{L_+t}, 0")
        e(f"v_mov_b32 v{M_+t}, 0xff800000")
    e("s_mov_b32 s53, 0x7fff0000")
    e("s_mov_b32 s38, 0")
    e("s_waitcnt lgkmcnt(0)")
    for (d, s, n) in ((12, 4, 6291456), (16, 6, 67108864), (20, 8, 67108864), (24, 10, 6291456)):
        e(f"s_mov_b32 s{d}, s{s}")
        e(f"s_and_b32 s{d+1}, s{s+1}, 0xffff")
        e(f"s_mov_b32 s{d+2}, {n}")
        e(f"s_mov_b32 s{d+3}, 0x00020000")
    for x in issue('K', 0): e(x)
    e("s_mul_i32 s54, s30, 24")
    e(f"s_add_u32 s55, s31, {QOFF}")
    e("s_mul_i32 s56, s30, 6144")
    e("s_add_u32 s56, s56, s41")
    for j in range(6):
        e(f"s_add_u32 s57, s54, {4*j}")
        e("v_add_u32 v186, s57, v184")
        e("v_xor_b32 v186, v186, v185")
        e("v_and_b32 v186, 15, v186")
        e("v_lshlrev_b32 v186, 4, v186")
        e(f"v_lshl_add_u32 v{190+j}, v184, 8, v186")
    for j in range(6):
        if j % 4 == 0:
            e(f"s_add_u32 s57, s55, {j*1024}")
            e("s_mov_b32 m0, s57")
            e(f"s_add_u32 s58, s56, {j*1024}")
        e(f"buffer_load_dwordx4 v{190+j}, s[12:15], s58 offen offset:{(j%4)*1024} lds")
    for x in issue('V', 0): e(x)
    for x in issue('K', 1): e(x)
    if os.environ.get('LATE') != '1':
        for x in issue('V', 1): e(x)
    e(f"v_add_u32 v{KADDR}, s31, v{KBASE}")
    for kk in range(1, 8):
        e(f"v_xor_b32 v{KADDR+kk}, {kk*32}, v{KADDR}")
    e(f"v_add_u32 v{VADDR}, s31, v{VBASE}")
    for dt in range(1, 4):
        e(f"v_xor_b32 v{VADDR+dt}, {dt*64}, v{VADDR}")
    for t in range(3):
        e(f"v_add_u32 v196, {32*t}, v204")
        e("v_mul_u32_u24 v197, 43, v196")
        e("v_lshrrev_b32 v197, 10, v197")
        e("v_mul_u32_u24 v198, 24, v197")
        e("v_sub_u32 v198, v196, v198")
        e("v_mul_u32_u24 v197, 40960, v197")
        e("v_lshl_add_u32 v197, v198, 8, v197")
        e("v_and_b32 v198, 15, v196")
        e("v_xor_b32 v198, v198, v205")
        e("v_lshl_add_u32 v197, v198, 4, v197")
        e(f"v_add_u32 v{200+t}, {QOFF}, v197")
    for r in range(4):
        e(f"v_mov_b32 v{S0+r}, 0")
    for r in range(16):
        e(f"v_mov_b32 v{S0+32+r}, 0xff800000")
    e("s_nop 1")
    for r in range(12):
        e(f"v_mfma_f32_32x32x16_bf16 a[{16*r}:{16*r+15}], v[{S0}:{S0+3}], v[{S0}:{S0+3}], 0")
    e(f"v_mfma_f32_32x32x16_bf16 a[{AV}:{AV+15}], v[{S0}:{S0+3}], v[{S0}:{S0+3}], 0")
    e(f"v_mfma_f32_32x32x16_bf16 a[{AV+16}:{AV+31}], v[{S0}:{S0+3}], v[{S0}:{S0+3}], 0")
    e("s_waitcnt vmcnt(16)" if os.environ.get("LATE") == "1" else "s_waitcnt vmcnt(24)")
    e("s_barrier")
    for t in range(3):
        for kk in range(8):
            q = Q0 + (t*8+kk)*4
            if kk == 0:
                e(f"ds_read_b128 v[{q}:{q+3}], v{200+t}")
            else:
                e(f"v_xor_b32 v{206+(kk&3)}, {kk*32}, v{200+t}")
                e(f"ds_read_b128 v[{q}:{q+3}], v{206+(kk&3)}")
    for x in kread(0): e(x)
    e("s_waitcnt lgkmcnt(0)")
    stamp(1)
    lab("L_LOOP")
    iteration("LA", 0)
    if STAMP:
        e("s_add_u32 s46, s38, 1")
        stamp("s46")
    iteration("LB", 1)
    if STAMP:
        e("s_add_u32 s46, s38, 1")
        stamp("s46")
    e("s_cmp_lt_u32 s38, 16")
    e("s_cbranch_scc1 L_LOOP")
    for x in softmax_b(2): e(x)
    e("s_nop 1")
    for x in pv_mfmas(2): e(x)
    stamp(18)
    for t in range(3):
        e(f"v_mov_b32 v{TMP+t}, v{L_+t}")
    e("s_nop 1")
    for t in range(3):
        e(f"v_permlane32_swap_b32 v{L_+t}, v{TMP+t}")
    e("s_nop 1")
    for t in range(3):
        e(f"v_add_f32 v{L_+t}, v{L_+t}, v{TMP+t}")
    e("v_lshlrev_b32 v184, 2, v1")
    e("v_add_u32 v185, s31, v184")
    e("s_waitcnt vmcnt(0)")
    stamp(33)
    for t in range(3):
        e(f"ds_write_b32 v185, v{M_+t} offset:{STATS+t*256}")
        e(f"ds_write_b32 v185, v{L_+t} offset:{STATS+768+t*256}")
    for w in range(4):
        e(f"v_add_u32 v{244+w}, {w*WREG}, v184")
    e("v_lshlrev_b32 v248, 4, v1")
    for d in range(4):
        e(f"s_cmp_eq_u32 s30, {d}")
        e(f"s_cbranch_scc1 L_SKIPW{d}")
        e(f"s_sub_u32 s54, {d+3}, s30")
        e("s_and_b32 s54, s54, 3")
        e("s_mul_i32 s54, s54, 12288")
        e("s_add_u32 s54, s54, s31")
        e("v_add_u32 v249, s54, v248")
        for t in range(3):
            for q in range(4):
                a_ = AO + (t*4+d)*16 + q*4
                e(f"ds_write_b128 v249, a[{a_}:{a_+3}] offset:{(t*4+q)*1024}")
        lab(f"L_SKIPW{d}")
    stamp(34)
    for w in range(4):
        lab(f"L_OWN{w}")
        if w < 3:
            e(f"s_cmp_lg_u32 s30, {w}")
            e(f"s_cbranch_scc1 L_OWN{w+1}")
        for t in range(3):
            for q in range(4):
                a_ = AO + (t*4+w)*16 + q*4
                b_ = 48 + (t*4+q)*4
                for r in range(4):
                    e(f"v_accvgpr_read_b32 v{b_+r}, a{a_+r}")
        if w < 3:
            e("s_branch L_OWNDONE")
    lab("L_OWNDONE")
    e("v_and_b32 v243, 31, v1")
    e("v_lshrrev_b32 v239, 5, v1")
    e("v_lshlrev_b32 v243, 8, v243")
    e("v_lshl_add_u32 v243, v239, 3, v243")
    e("s_lshl_b32 s54, s30, 6")
    e("v_add_u32 v243, s54, v243")
    e("s_waitcnt lgkmcnt(0)")
    stamp(25)
    e("s_barrier")
    stamp(26)
    for w in range(4):
        for t in range(3):
            e(f"ds_read_b32 v{200+4*w+t}, v{244+w} offset:{STATS+t*256}")
            e(f"ds_read_b32 v{216+4*w+t}, v{244+w} offset:{STATS+768+t*256}")
    srcread(0)
    srcread(1)
    e("s_waitcnt lgkmcnt(0)")
    stamp(27)
    for t in range(3):
        M = 232 + t; Lr = 236 + t; g = 240 + t
        e(f"v_max_f32 v{M}, v{200+t}, v{204+t}")
        e(f"v_max3_f32 v{M}, v{M}, v{208+t}, v{212+t}")
        for w in range(4):
            e(f"v_sub_f32 v{200+4*w+t}, v{200+4*w+t}, v{M}")
            e(f"v_exp_f32 v{200+4*w+t}, v{200+4*w+t}")
        e("s_nop 0")
        e(f"v_mul_f32 v{Lr}, v{200+t}, v{216+t}")
        for w in range(1, 4):
            e(f"v_fmac_f32 v{Lr}, v{200+4*w+t}, v{216+4*w+t}")
        e(f"v_rcp_f32 v{Lr}, v{Lr}")
        e(f"v_sub_f32 v{g}, v{M_+t}, v{M}")
        e(f"v_exp_f32 v{g}, v{g}")
        e("s_nop 0")
        e(f"v_mul_f32 v{g}, v{g}, v{Lr}")
        for w in range(4):
            e(f"v_mul_f32 v{200+4*w+t}, v{200+4*w+t}, v{Lr}")
    for t in range(3):
        for k in range(16):
            b_ = 48 + t*16 + k
            e(f"v_mul_f32 v{b_}, v{b_}, v{240+t}")
    stamp(30)
    srcacc(0)
    srcread(2)
    srcacc(1)
    srcread(3)
    e("s_waitcnt lgkmcnt(0)")
    stamp(31)
    srcacc(2)
    srcacc(3)
    stamp(32)
    e("s_add_u32 s55, s41, 4096")
    e("v_and_b32 v243, 31, v1")
    e("v_lshrrev_b32 v239, 5, v1")
    e("v_mul_u32_u24 v243, 272, v243")
    e("v_lshl_add_u32 v243, v239, 3, v243")
    e("s_lshl_b32 s54, s30, 6")
    e("v_add_u32 v243, s54, v243")
    for k in range(12):
        o = 48 + k*4
        e(f"v_cvt_pk_bf16_f32 v{o}, v{o}, v{o+1}")
        e(f"v_cvt_pk_bf16_f32 v{o+1}, v{o+2}, v{o+3}")
    e("s_barrier")
    for t in range(3):
        for q in range(4):
            o = 48 + (t*4+q)*4
            e(f"ds_write_b64 v243, v[{o}:{o+1}] offset:{t*32*272+q*16}")
    e("v_lshrrev_b32 v239, 4, v1")
    e("s_mul_i32 s54, s30, 24")
    e("v_add_u32 v239, s54, v239")
    e("v_and_b32 v242, 15, v1")
    e("v_lshlrev_b32 v242, 4, v242")
    e("v_mul_u32_u24 v241, 272, v239")
    e("v_add_u32 v241, v241, v242")
    e("v_lshl_add_u32 v240, v239, 8, v242")
    e("s_waitcnt lgkmcnt(0)")
    e("s_barrier")
    for j in range(6):
        e(f"ds_read_b128 v[{96+4*j}:{99+4*j}], v241 offset:{j*4*272}")
    for j in range(6):
        e(f"s_waitcnt lgkmcnt({5-j})")
        e(f"buffer_store_dwordx4 v[{96+4*j}:{99+4*j}], v240, s[24:27], s41 offen offset:{(j*1024) if j < 4 else (j-4)*1024}") if j < 4 else e(f"buffer_store_dwordx4 v[{96+4*j}:{99+4*j}], v240, s[24:27], s55 offen offset:{(j-4)*1024}")
    if STAMP:
        lab("L_FIN")
        stamp(19)
        if RT:
            e("s_memrealtime s[68:69]")
            e("s_load_dwordx2 s[60:61], s[0:1], 40")
            e("s_waitcnt lgkmcnt(0)")
            e("s_mov_b32 s62, 0x10000")
            e("s_mov_b32 s63, 0x00020000")
            e("s_lshl_b32 s64, s2, 3")
            e("s_add_u32 s64, s64, s30")
            e("s_lshl_b32 s64, s64, 3")
            e("v_mov_b32 v252, s66")
            e("v_mov_b32 v253, s68")
            e("v_mov_b32 v254, s64")
            e("buffer_store_dwordx2 v[252:253], v254, s[60:63], 0 offen")
        if os.environ.get('DUR'):
            d0 = int(os.environ['DUR'])
            e(f"s_sub_u32 s60, s2, {d0}")
            e("s_cmp_ge_u32 s60, 16")
            e("s_cbranch_scc1 L_END")
            e("s_cmp_lg_u32 s30, 0")
            e("s_cbranch_scc1 L_END")
            e("s_load_dwordx2 s[48:49], s[0:1], 32")
            e("s_waitcnt lgkmcnt(0)")
            e("s_mov_b32 s50, 256")
            e("s_mov_b32 s51, 0x00020000")
            e("v_readlane_b32 s61, v250, 0")
            e("v_readlane_b32 s62, v250, 19")
            e("s_sub_u32 s62, s62, s61")
            e("s_lshl_b32 s60, s60, 2")
            e("v_mov_b32 v251, s60")
            e("v_mov_b32 v252, s62")
            e("buffer_store_dword v252, v251, s[48:51], 0 offen")
        else:
            e("s_cmp_lg_u32 s2, " + os.environ.get('STAMPWG', '0'))
            e("s_cbranch_scc1 L_END")
            e("s_cmp_lg_u32 s30, 0")
            e("s_cbranch_scc1 L_END")
            e("s_load_dwordx2 s[48:49], s[0:1], 32")
            e("s_waitcnt lgkmcnt(0)")
            e("s_mov_b32 s50, 256")
            e("s_mov_b32 s51, 0x00020000")
            e("v_lshlrev_b32 v251, 2, v1")
            e("buffer_store_dword v250, v251, s[48:51], 0 offen")
    lab("L_END")
    e("s_endpgm")
    for h in handlers:
        for x in h:
            if x.endswith(":"): out.append(x)
            else: e(x)
    out.append('.section .rodata,"a"')
    out.append(".p2align 6")
    out.append(f".amdhsa_kernel {NAME}_kernel")
    out.append("  .amdhsa_next_free_vgpr 512")
    out.append("  .amdhsa_next_free_sgpr 102")
    out.append("  .amdhsa_accum_offset 256")
    out.append("  .amdhsa_group_segment_fixed_size 0")
    out.append("  .amdhsa_kernarg_size 48")
    out.append("  .amdhsa_user_sgpr_count 2")
    out.append("  .amdhsa_user_sgpr_kernarg_segment_ptr 1")
    out.append("  .amdhsa_system_sgpr_workgroup_id_x 1")
    out.append(".end_amdhsa_kernel")

main()
open(sys.argv[1] if len(sys.argv) > 1 else "standalone__gqa_softmax__near_ridge.s", "w").write("\n".join(out) + "\n")
```
